```python
import torch

def _softmax(x, axis=-1):
    return torch.softmax(x, dim=axis)
def _gelu(x):
    return torch.nn.functional.gelu(x, approximate="tanh")
def _silu(x):
    return torch.nn.functional.silu(x)
def _sigmoid(x):
    return torch.sigmoid(x)
def _layernorm(x, axis=-1, eps=1e-5):
    m = x.mean(dim=axis, keepdim=True)
    v = x.var(dim=axis, keepdim=True, unbiased=False)
    return (x - m) / torch.sqrt(v + eps)
def _scatter_add(tgt, idx, src, axis=0):
    return tgt.clone().index_add_(axis, idx, src)
def _segment_sum(src, seg, n):
    out = torch.zeros((n,) + src.shape[1:], dtype=src.dtype)
    return out.index_add_(0, seg, src)
def _pad(x, pw):
    flat = tuple(v for pair in reversed(pw) for v in pair)
    return torch.nn.functional.pad(x, flat)

kernel_name = 'standalone__swiglu_ffn__sampling'

def setup_inputs():

    _w = (lambda a: (lambda t: t.to(torch.bfloat16) if t.is_floating_point() else t)(torch.as_tensor(a)))
    B, S, D, F = 16, 4, 1024, 3584
    return {
        "x": _w((lambda *s: torch.randn(*s, dtype=torch.bfloat16) * 0.05)(B, S, D)),
        "w_gate": _w((lambda *s: torch.randn(*s, dtype=torch.bfloat16) * 0.05)(D, F)),
        "w_up": _w((lambda *s: torch.randn(*s, dtype=torch.bfloat16) * 0.05)(D, F)),
        "w_down": _w((lambda *s: torch.randn(*s, dtype=torch.bfloat16) * 0.05)(F, D)),
    }

def reference(x, w_gate, w_up, w_down):
    g = _silu(x @ w_gate)
    u = x @ w_up
    return (g * u) @ w_down
```

```python
class Asm:
    def __init__(self):
        self.lines = []
    def __call__(self, s=""):
        for l in s.split("\n"):
            self.lines.append(l)
    def text(self):
        return "\n".join(self.lines) + "\n"

def vr(a, n=1):
    return f"v{a}" if n == 1 else f"v[{a}:{a+n-1}]"
def ar(a, n=1):
    return f"a{a}" if n == 1 else f"a[{a}:{a+n-1}]"
def sr(a, n=1):
    return f"s{a}" if n == 1 else f"s[{a}:{a+n-1}]"

HEADER = """; Kernarg layout for this problem (56 bytes, ptrs only, base s[0:1]):
"""

def kernel_begin(a, name):
    a(f".globl {name}")
    a(".p2align 8")
    a(f".type {name},@function")
    a(f"{name}:")

def kernel_desc(a, name, nvgpr, nsgpr, accum):
    a(f".amdhsa_kernel {name}")
    a(f"  .amdhsa_next_free_vgpr {nvgpr}")
    a(f"  .amdhsa_next_free_sgpr {nsgpr}")
    a(f"  .amdhsa_accum_offset {accum}")
    a("  .amdhsa_group_segment_fixed_size 0")
    a("  .amdhsa_kernarg_size 56")
    a("  .amdhsa_user_sgpr_count 2")
    a("  .amdhsa_user_sgpr_kernarg_segment_ptr 1")
    a("  .amdhsa_system_sgpr_workgroup_id_x 1")
    a("  .amdhsa_float_denorm_mode_32 3")
    a(".end_amdhsa_kernel")

def srd(a, d, b, nbytes):
    a(f"    s_mov_b32 s{d}, s{b}")
    a(f"    s_and_b32 s{d+1}, s{b+1}, 0xffff")
    a(f"    s_mov_b32 s{d+2}, {nbytes}")
    a(f"    s_mov_b32 s{d+3}, 0x00020000")
```

```python
import sys
from asmlib import *
D=1024; F=3584; M=64
a=Asm()
a(HEADER.rstrip())
a("; @launch kernel=ffn_up_kernel grid=(224,1,1) block=(256,1,1) lds=65536")
a("; @launch kernel=ffn_down_kernel grid=(256,1,1) block=(256,1,1) lds=118784")
a('.amdgcn_target "amdgcn-amd-amdhsa--gfx950"')
a(".text")
kernel_begin(a,"ffn_up_kernel")
a("    s_cmp_ge_u32 s2, 224")
a("    s_cbranch_scc1 L_up_end")
a("    s_load_dwordx4 s[4:7], s[0:1], 0")
a("    s_load_dwordx2 s[8:9], s[0:1], 16")
a("    s_load_dwordx2 s[10:11], s[0:1], 48")
a("    s_and_b32 s3, s2, 7")
a("    s_mul_i32 s3, s3, 28")
a("    s_lshr_b32 s12, s2, 3")
a("    s_add_u32 s3, s3, s12")
a("    v_lshrrev_b32 v1, 6, v0")
a("    v_and_b32 v2, 63, v0")
a("    s_nop 0")
a("    v_readfirstlane_b32 s13, v1")
a("    v_lshrrev_b32 v3, 1, v2")
a("    v_bfe_u32 v4, v3, 2, 2")
a("    v_lshlrev_b32 v4, 3, v4")
a("    v_lshrrev_b32 v5, 4, v3")
a("    v_lshl_add_u32 v4, v5, 2, v4")
a("    v_and_b32 v5, 3, v3")
a("    v_add_u32 v4, v4, v5")
a("    v_mul_u32_u24 v4, 7168, v4")
a("    v_and_b32 v5, 1, v2")
a("    v_lshl_add_u32 v4, v5, 4, v4")
a("    v_and_b32 v5, 15, v2")
a("    v_lshl_add_u32 v5, v1, 4, v5")
a("    v_lshlrev_b32 v5, 11, v5")
a("    v_lshrrev_b32 v6, 4, v2")
a("    v_lshl_add_u32 v5, v6, 4, v5")
a("    v_lshlrev_b32 v7, 3, v2")
a("    s_waitcnt lgkmcnt(0)")
srd(a,16,4,M*D*2)
srd(a,20,6,D*F*2)
srd(a,24,8,D*F*2)
srd(a,28,10,M*F*2)
a("    s_lshl_b32 s14, s3, 5")
a("    s_mul_i32 s15, s13, %d"%(32*7168))
a("    s_add_u32 s14, s14, s15")
a("    s_lshl_b32 s15, s13, 10")
for i in range(8):
    a("    s_mov_b32 m0, s15")
    a("    s_nop 0")
    a("    buffer_load_dwordx4 v4, s[20:23], s14 offen lds")
    a("    s_add_u32 m0, s15, 32768")
    a("    s_nop 0")
    a("    buffer_load_dwordx4 v4, s[24:27], s14 offen lds")
    a("    s_add_u32 s14, s14, %d"%(4*32*7168))
    a("    s_add_u32 s15, s15, 4096")
XB=32
for ks in range(32):
    a(f"    buffer_load_dwordx4 {vr(XB+4*ks,4)}, v5, s[16:19], 0 offen offset:{ks*64}")
for r in range(8):
    a(f"    v_mov_b32 v{16+r}, 0")
a("    s_waitcnt vmcnt(0)")
a("    s_barrier")
FB=160
def rd(ks):
    b=FB+8*(ks%4)
    a(f"    ds_read_b64_tr_b16 {vr(b,2)}, v7 offset:{ks*1024}")
    a(f"    ds_read_b64_tr_b16 {vr(b+2,2)}, v7 offset:{ks*1024+512}")
    a(f"    ds_read_b64_tr_b16 {vr(b+4,2)}, v7 offset:{32768+ks*1024}")
    a(f"    ds_read_b64_tr_b16 {vr(b+6,2)}, v7 offset:{32768+ks*1024+512}")
rd(0); rd(1)
for ks in range(32):
    if ks+2<32:
        rd(ks+2)
        a("    s_waitcnt lgkmcnt(8)")
    elif ks+1<32:
        a("    s_waitcnt lgkmcnt(4)")
    else:
        a("    s_waitcnt lgkmcnt(0)")
    b=FB+8*(ks%4)
    a(f"    v_mfma_f32_16x16x32_bf16 v[16:19], {vr(b,4)}, {vr(XB+4*ks,4)}, v[16:19]")
    a(f"    v_mfma_f32_16x16x32_bf16 v[20:23], {vr(b+4,4)}, {vr(XB+4*ks,4)}, v[20:23]")
a("    s_nop 7")
a("    v_cvt_pk_bf16_f32 v24, v16, v17")
a("    v_cvt_pk_bf16_f32 v25, v18, v19")
a("    v_cvt_pk_bf16_f32 v26, v20, v21")
a("    v_cvt_pk_bf16_f32 v27, v22, v23")
a("    s_mov_b32 s32, 0xffff0000")
a("    s_mov_b32 s33, 0xbfb8aa3b")
a("    v_lshlrev_b32 v16, 16, v24")
a("    v_and_b32 v17, s32, v24")
a("    v_lshlrev_b32 v18, 16, v25")
a("    v_and_b32 v19, s32, v25")
a("    v_lshlrev_b32 v20, 16, v26")
a("    v_and_b32 v21, s32, v26")
a("    v_lshlrev_b32 v22, 16, v27")
a("    v_and_b32 v23, s32, v27")
for r in range(4): a(f"    v_mul_f32 v{24+r}, s33, v{16+r}")
for r in range(4): a(f"    v_exp_f32 v{24+r}, v{24+r}")
a("    s_nop 0")
for r in range(4): a(f"    v_add_f32 v{24+r}, 1.0, v{24+r}")
for r in range(4): a(f"    v_rcp_f32 v{24+r}, v{24+r}")
a("    s_nop 0")
for r in range(4): a(f"    v_mul_f32 v{16+r}, v{16+r}, v{24+r}")
a("    v_cvt_pk_bf16_f32 v24, v16, v17")
a("    v_cvt_pk_bf16_f32 v25, v18, v19")
a("    v_lshlrev_b32 v16, 16, v24")
a("    v_and_b32 v17, s32, v24")
a("    v_lshlrev_b32 v18, 16, v25")
a("    v_and_b32 v19, s32, v25")
for r in range(4): a(f"    v_mul_f32 v{16+r}, v{16+r}, v{20+r}")
a("    v_cvt_pk_bf16_f32 v24, v16, v17")
a("    v_cvt_pk_bf16_f32 v25, v18, v19")
a("    s_mul_i32 s14, s13, %d"%(112*1024))
a("    s_lshr_b32 s15, s3, 1")
a("    s_lshl_b32 s15, s15, 10")
a("    s_add_u32 s14, s14, s15")
a("    s_and_b32 s15, s3, 1")
a("    s_lshl_b32 s15, s15, 3")
a("    s_add_u32 s14, s14, s15")
a("    v_lshlrev_b32 v8, 4, v2")
a("    buffer_store_dwordx2 v[24:25], v8, s[28:31], s14 offen")
a("L_up_end:")
a("    s_endpgm")
kernel_begin(a,"ffn_down_kernel")
a("    s_cmp_ge_u32 s2, 256")
a("    s_cbranch_scc1 L_dn_end")
a("    s_load_dwordx4 s[4:7], s[0:1], 24")
a("    s_load_dwordx2 s[10:11], s[0:1], 48")
a("    s_and_b32 s3, s2, 7")
a("    s_lshl_b32 s3, s3, 3")
a("    s_lshr_b32 s12, s2, 5")
a("    s_add_u32 s3, s3, s12")
a("    s_bfe_u32 s12, s2, 0x20003")
a("    v_lshrrev_b32 v1, 6, v0")
a("    v_and_b32 v2, 63, v0")
a("    s_nop 0")
a("    v_readfirstlane_b32 s13, v1")
a("    v_lshrrev_b32 v3, 1, v2")
a("    v_lshlrev_b32 v4, 11, v3")
a("    v_and_b32 v5, 1, v2")
a("    v_lshl_add_u32 v4, v5, 4, v4")
a("    v_lshlrev_b32 v5, 4, v2")
a("    v_lshlrev_b32 v7, 3, v2")
a("    s_mul_i32 s15, s13, %d"%(28*1024))
a("    v_add_u32 v7, s15, v7")
a("    s_waitcnt lgkmcnt(0)")
srd(a,16,4,D*F*2)
srd(a,20,6,M*D*2)
srd(a,28,10,M*F*2)
a("    s_lshl_b32 s14, s3, 5")
a("    s_mul_i32 s24, s13, %d"%(28*32*2048))
a("    s_add_u32 s14, s14, s24")
a("    s_mul_i32 s25, s12, %d"%(112*1024))
a("    s_add_u32 s25, s25, s15")
HB=32
for i in range(28):
    a("    s_mov_b32 m0, s15")
    a("    s_add_u32 s15, s15, 1024")
    a("    buffer_load_dwordx4 v4, s[16:19], s14 offen lds")
    a("    s_add_u32 s14, s14, %d"%(32*2048))
    a(f"    buffer_load_dwordx4 {vr(HB+4*i,4)}, v5, s[28:31], s25 offen offset:{(i%4)*1024}")
    if i%4==3: a("    s_add_u32 s25, s25, 4096")
for r in range(4):
    a(f"    v_mov_b32 v{16+r}, 0")
FB=160
def rd2(ks):
    b=FB+4*(ks%4)
    a(f"    s_waitcnt vmcnt({2*(27-ks)})")
    a(f"    ds_read_b64_tr_b16 {vr(b,2)}, v7 offset:{ks*1024}")
    a(f"    ds_read_b64_tr_b16 {vr(b+2,2)}, v7 offset:{ks*1024+512}")
rd2(0); rd2(1)
for ks in range(28):
    if ks+2<28:
        rd2(ks+2)
        a("    s_waitcnt lgkmcnt(4)")
    elif ks+1<28:
        a("    s_waitcnt lgkmcnt(2)")
    else:
        a("    s_waitcnt lgkmcnt(0)")
    b=FB+4*(ks%4)
    a(f"    v_mfma_f32_16x16x32_bf16 v[16:19], {vr(b,4)}, {vr(HB+4*ks,4)}, v[16:19]")
a("    s_nop 7")
a("    v_lshlrev_b32 v8, 4, v0")
a("    v_add_u32 v8, 114688, v8")
a("    ds_write_b128 v8, v[16:19]")
a("    s_waitcnt lgkmcnt(0)")
a("    s_barrier")
a("    s_cmp_lg_u32 s13, 0")
a("    s_cbranch_scc1 L_dn_end")
a("    ds_read_b128 v[20:23], v8 offset:1024")
a("    ds_read_b128 v[24:27], v8 offset:2048")
a("    ds_read_b128 v[28:31], v8 offset:3072")
a("    s_waitcnt lgkmcnt(0)")
for r in range(4):
    a(f"    v_add_f32 v{16+r}, v{16+r}, v{20+r}")
    a(f"    v_add_f32 v{24+r}, v{24+r}, v{28+r}")
for r in range(4):
    a(f"    v_add_f32 v{16+r}, v{16+r}, v{24+r}")
a("    v_cvt_pk_bf16_f32 v20, v16, v17")
a("    v_cvt_pk_bf16_f32 v21, v18, v19")
a("    v_and_b32 v9, 15, v2")
a("    v_lshlrev_b32 v9, 11, v9")
a("    v_lshrrev_b32 v10, 4, v2")
a("    v_lshl_add_u32 v9, v10, 3, v9")
a("    s_lshl_b32 s14, s12, 15")
a("    s_lshl_b32 s15, s3, 5")
a("    s_add_u32 s14, s14, s15")
a("    buffer_store_dwordx2 v[20:21], v9, s[20:23], s14 offen")
a("L_dn_end:")
a("    s_endpgm")
a('.section .rodata,"a"')
a(".p2align 6")
kernel_desc(a,"ffn_up_kernel",192,40,192)
a(".p2align 6")
kernel_desc(a,"ffn_down_kernel",192,40,192)
open(sys.argv[1],"w").write(a.text())
```

```python
import sys
from asmlib import *
base=open('v1.s').read()
k1="; @launch kernel=ffn_up_kernel grid=(224,1,1) block=(256,1,1) lds=65536\n"
k2="; @launch kernel=ffn_down_kernel grid=(256,1,1) block=(256,1,1) lds=118784\n"
RES=200<<20
def delay_kernel(factor):
    a=Asm(); kernel_begin(a,"delay_kernel")
    a("    s_cmp_ge_u32 s2, 1\n    s_cbranch_scc1 L_dl_end")
    a("    s_load_dwordx2 s[4:5], s[0:1], 48\n    s_waitcnt lgkmcnt(0)")
    a(f"    s_add_u32 s4, s4, {RES}\n    s_addc_u32 s5, s5, 0")
    a("    s_load_dword s6, s[4:5], 0\n    s_memtime s[8:9]\n    s_waitcnt lgkmcnt(0)")
    a("    s_min_u32 s6, s6, 60000")
    a(f"    s_mul_i32 s6, s6, {factor}")
    a("L_dl_loop:\n    s_memtime s[10:11]\n    s_waitcnt lgkmcnt(0)\n    s_sub_u32 s10, s10, s8\n    s_cmp_lt_u32 s10, s6\n    s_cbranch_scc1 L_dl_loop")
    a("L_dl_end:\n    s_endpgm")
    return a.text()
def probe_kernel(argoff, off, stride, nbytes, flags=""):
    a=Asm(); kernel_begin(a,"probe_kernel")
    a("    s_cmp_ge_u32 s2, 1\n    s_cbranch_scc1 L_pr_end")
    a(f"    s_load_dwordx2 s[4:5], s[0:1], {argoff}\n    s_load_dwordx2 s[6:7], s[0:1], 48\n    s_load_dwordx2 s[20:21], s[0:1], 40\n    s_waitcnt lgkmcnt(0)")
    srd(a,8,4,nbytes); srd(a,12,6,256<<20); srd(a,24,20,256)
    a("    v_mov_b32 v1, 0\n    s_mov_b64 exec, 1\n    s_mov_b32 s16, 0")
    a(f"    s_mov_b32 s17, {off}")
    for i in range(9):
        a("    s_memtime s[18:19]\n    s_waitcnt lgkmcnt(0)")
        a(f"    buffer_load_dword v2, v1, s[8:11], s17 offen {flags}\n    s_waitcnt vmcnt(0)")
        a("    s_memtime s[22:23]\n    s_waitcnt lgkmcnt(0)\n    s_sub_u32 s22, s22, s18")
        if i>0: a("    s_add_u32 s16, s16, s22")
        a(f"    v_mov_b32 v3, s22\n    buffer_store_dword v3, v1, s[24:27], 0 offen offset:{4*i}")
        a(f"    s_add_u32 s17, s17, {stride}")
    a("    s_lshr_b32 s16, s16, 3")
    a(f"    v_mov_b32 v3, s16\n    s_mov_b32 s17, {RES}\n    buffer_store_dword v3, v1, s[12:15], s17 offen")
    a("L_pr_end:\n    s_endpgm")
    return a.text()
def mk(path, pk, factor=100):
    d=Asm(); d(".p2align 6"); kernel_desc(d,"probe_kernel",8,40,8); d(".p2align 6"); kernel_desc(d,"delay_kernel",8,40,8)
    s=base.replace('.section .rodata,"a"\n', pk+delay_kernel(factor)+'.section .rodata,"a"\n')+d.text()
    s=s.replace(k1,"; @launch kernel=probe_kernel grid=(1,1,1) block=(64,1,1) lds=0\n"+k1).replace(k2,k2+"; @launch kernel=delay_kernel grid=(1,1,1) block=(64,1,1) lds=0\n")
    open(path,"w").write(s)
if __name__=="__main__":
    W=1024*3584*2
    mk("pr_wg.s",probe_kernel(8,4096,65536+128,W))
    mk("pr_wd.s",probe_kernel(24,W-700000,65536+128,W))
    mk("pr_x.s",probe_kernel(0,0,8192+128,131072))
    mk("pr_ws0.s",probe_kernel(48,1<<20,65536+128,256<<20))
    mk("pr_ws255.s",probe_kernel(48,255<<20,65536+128,256<<20))
    mk("pr_out.s",probe_kernel(32,0,8192+128,131072))
```

```python
import sys
from asmlib import *
NAME="standalone__swiglu_ffn__sampling_kernel"
M,D,F=64,1024,3584
HD=0x10000; HC=0x80000; PB=0x100000; WSN=0x500000
STAMP_OFF=128<<20
SPIN=1<<18

def gen(path, stamps=False, row0=128, swap=1, wdflags="nt", outflags="", codepf=False, tagchunk=9):
    a=Asm()
    a(HEADER.rstrip())
    a("; @launch grid=(256,1,1) block=(256,1,1) lds=81920")
    a('.amdgcn_target "amdgcn-amd-amdhsa--gfx950"')
    a(".text")
    kernel_begin(a,NAME)
    X,G,U,WD,OUT,DBG,WS=4,8,12,16,20,24,28
    sJ,sS,sW,sW1K=32,33,34,35
    sT0,sT1,sT2=36,37,38
    sWoff,sXoff,sWd,sSwap=39,40,41,42
    sTag=43; sTB=44
    sSel=48
    sHd=52
    sHc0,sHc1=59,60
    sSpin=61
    sKs,sNb=62,63
    sP=64
    sRed,sOut=68,69
    sMask,sNl2e=70,71
    sST=72
    NST=9
    vL=1; vT0,vT1,vT2,vT3=2,3,4,5
    vWg,vWu,vX,vA,vA2=6,7,8,9,10
    vB=11
    vWd=15; vD=16
    vTag=20; vL16=21; vL4=22; vDum=23
    vHs=24; vHsc=25; vPs=26; vOut=27; vAcc=28
    ACC=32
    FR=48
    CK=76
    WF=84
    NV=200
    nst=[0]
    def stamp(i):
        if stamps:
            a(f"    s_memtime s[{sST+2*i}:{sST+2*i+1}]")
            a("    s_waitcnt lgkmcnt(0)")
    if stamps:
        a(f"    s_memrealtime s[{sST+2*NST}:{sST+2*NST+1}]")
        a(f"    s_memtime s[{sST}:{sST+1}]")
    a("    s_cmp_ge_u32 s2, 256")
    a("    s_cbranch_scc1 L_end")
    for i,b in enumerate((X,G,U,WD,OUT,DBG,WS)):
        a(f"    s_load_dwordx2 s[{b}:{b+1}], s[0:1], {8*i}")
    for b,n in ((X,M*D*2),(G,D*F*2),(U,D*F*2),(WD,D*F*2),(OUT,M*D*2),(DBG,256),(WS,(256<<20) if stamps else WSN)):
        a(f"    s_mov_b32 s{b+2}, {n}")
        a(f"    s_mov_b32 s{b+3}, 0x20000")
    a(f"    v_lshrrev_b32 v{vT0}, 6, v0")
    a(f"    v_and_b32 v{vL}, 63, v0")
    a(f"    s_and_b32 s{sJ}, s2, 7")
    a(f"    v_readfirstlane_b32 s{sW}, v{vT0}")
    a(f"    s_lshr_b32 s{sS}, s2, 3")
    a(f"    v_lshrrev_b32 v{vT1}, 3, v{vL}")
    a(f"    v_and_b32 v{vT2}, 7, v{vL}")
    a(f"    s_lshl_b32 s{sW1K}, s{sW}, 10")
    a(f"    s_cmp_ge_u32 s{sS}, 14")
    a("    s_cbranch_scc1 L_pf")

    def common_setup():
        a(f"    s_lshr_b32 s{sT0}, s{sS}, 4")
        a(f"    s_lshl_b32 s{sKs}, s{sJ}, 1")
        a(f"    s_add_u32 s{sKs}, s{sKs}, s{sT0}")
        a(f"    s_and_b32 s{sNb}, s{sS}, 15")
        a(f"    v_and_b32 v{vT3}, 6, v{vT1}")
        a(f"    v_xor_b32 v{vT3}, v{vT3}, v{vT2}")
        a(f"    v_lshlrev_b32 v{vT3}, 4, v{vT3}")
        a(f"    v_lshl_add_u32 v{vWd}, v{vT1}, 11, v{vT3}")
        a(f"    s_mul_i32 s{sWd}, s{sKs}, {224*2048}")
        a(f"    s_lshl_b32 s{sT1}, s{sNb}, 7")
        a(f"    s_add_u32 s{sWd}, s{sWd}, s{sT1}")
        a(f"    s_lshl_b32 s{sT1}, s{sW}, 14")
        a(f"    s_add_u32 s{sWd}, s{sWd}, s{sT1}")
        a(f"    s_mul_i32 s{sT1}, s{sKs}, 28")
        a(f"    s_add_u32 s{sT1}, s{sT1}, s{sW}")
        a(f"    s_lshl_b32 s{sT2}, s{sT1}, 10")
        for cc in range(7):
            a(f"    s_add_u32 s{sHd+cc}, s{sT2}, {HD+cc*4096}")
        a(f"    s_lshl_b32 s{sT2}, s{sT1}, 8")
        a(f"    s_add_u32 s{sHc0}, s{sT2}, {HC}")
        a(f"    s_add_u32 s{sHc1}, s{sT2}, {HC+4096}")
        a(f"    s_lshl_b32 s{sT1}, s{sNb}, 18")
        a(f"    s_lshl_b32 s{sT2}, s{sW}, 16")
        a(f"    s_add_u32 s{sT2}, s{sT2}, s{sT1}")
        a(f"    s_lshl_b32 s{sT0}, s{sKs}, 8")
        a(f"    s_add_u32 s{sT2}, s{sT2}, s{sT0}")
        for ct in range(4):
            a(f"    s_add_u32 s{sP+ct}, s{sT2}, {PB+ct*4096}")
        a(f"    s_lshl_b32 s{sT0}, s{sKs}, 14")
        a(f"    s_add_u32 s{sRed}, s{sT1}, s{sT0}")
        a(f"    s_lshl_b32 s{sT0}, s{sW}, 12")
        a(f"    s_add_u32 s{sRed}, s{sRed}, s{sT0}")
        a(f"    s_add_u32 s{sRed}, s{sRed}, {PB}")
        a(f"    s_lshl_b32 s{sOut}, s{sKs}, 13")
        a(f"    s_lshl_b32 s{sT0}, s{sNb}, 7")
        a(f"    s_add_u32 s{sOut}, s{sOut}, s{sT0}")
        a(f"    s_lshl_b32 s{sT0}, s{sW}, 5")
        a(f"    s_add_u32 s{sOut}, s{sOut}, s{sT0}")
        for r in range(4):
            a(f"    s_mov_b32 s{sSel+r}, {0x07060500+r}")
        a(f"    v_lshlrev_b32 v{vL16}, 4, v{vL}")
        a(f"    v_lshlrev_b32 v{vL4}, 2, v{vL}")
        a(f"    v_lshrrev_b32 v{vT0}, 5, v{vL}")
        a(f"    v_lshlrev_b32 v{vT0}, 11, v{vT0}")
        a(f"    v_bfe_u32 v{vT3}, v{vL}, 2, 3")
        a(f"    v_lshl_add_u32 v{vT0}, v{vT3}, 7, v{vT0}")
        a(f"    v_and_b32 v{vT3}, 3, v{vL}")
        a(f"    v_lshl_add_u32 v{vT0}, v{vT3}, 3, v{vT0}")
        a(f"    v_and_b32 v{vT3}, 3, v{vT1}")
        a(f"    v_lshl_add_u32 v{vD}, v{vT3}, 5, v{vT0}")
        for ct in range(1,4):
            a(f"    v_xor_b32 v{vD+ct}, {ct*32}, v{vD}")
        a(f"    v_lshrrev_b32 v{vT0}, 4, v{vL}")
        a(f"    v_and_b32 v{vT3}, 15, v{vL}")
        a(f"    v_lshlrev_b32 v{vPs}, 14, v{vT0}")
        a(f"    v_lshl_add_u32 v{vPs}, v{vT3}, 4, v{vPs}")
        a(f"    v_lshlrev_b32 v{vOut}, 11, v{vT0}")
        a(f"    v_lshl_add_u32 v{vOut}, v{vT3}, 1, v{vOut}")
    def wd_dma(lo,hi,fl):
        for i in range(lo,hi):
            a(f"    s_add_u32 m0, s{sW1K}, {i*4096}")
            a(f"    s_add_u32 s{sT0}, s{sWd}, {i*32*2048}")
            a(f"    buffer_load_dwordx4 v{vWd}, s[{WD}:{WD+3}], s{sT0} offen {fl} lds")

    a(f"    v_and_b32 v{vT3}, 2, v{vT1}")
    a(f"    v_xor_b32 v{vT3}, v{vT3}, v{vT2}")
    a(f"    v_mul_u32_u24 v{vWg}, 7168, v{vT1}")
    a(f"    v_lshl_add_u32 v{vWg}, v{vT3}, 4, v{vWg}")
    a(f"    v_xor_b32 v{vWu}, 64, v{vWg}")
    a(f"    v_lshrrev_b32 v{vT3}, 1, v{vT1}")
    a(f"    v_lshl_add_u32 v{vT3}, v{vT0}, 2, v{vT3}")
    a(f"    v_and_b32 v{vT3}, 7, v{vT3}")
    a(f"    v_xor_b32 v{vT3}, v{vT3}, v{vT2}")
    a(f"    v_lshlrev_b32 v{vT3}, 4, v{vT3}")
    a(f"    v_lshl_add_u32 v{vX}, v{vT1}, 11, v{vT3}")
    a(f"    s_mul_i32 s{sWoff}, s{sJ}, 7")
    a(f"    s_lshr_b32 s{sT0}, s{sS}, 1")
    a(f"    s_add_u32 s{sWoff}, s{sWoff}, s{sT0}")
    a(f"    s_lshl_b32 s{sWoff}, s{sWoff}, 7")
    a(f"    s_mul_i32 s{sT0}, s{sW}, {8*7168}")
    a(f"    s_add_u32 s{sWoff}, s{sWoff}, s{sT0}")
    a(f"    s_and_b32 s{sSwap}, s{sS}, 1")
    a(f"    s_lshl_b32 s{sXoff}, s{sSwap}, 16")
    a(f"    s_lshl_b32 s{sT0}, s{sW}, 14")
    a(f"    s_add_u32 s{sXoff}, s{sXoff}, s{sT0}")
    SLOT=20480
    def chunk_ops(c):
        ops=[]
        base=(c%4)*SLOT
        if swap and c<2:
            pre=[f"    s_xor_b32 s{sT1}, s{sSwap}, {c}",
                 f"    s_lshl_b32 s{sT0}, s{sT1}, 7",
                 f"    s_add_u32 s{sT0}, s{sT0}, s{sXoff}",
                 f"    s_mul_i32 s{sT1}, s{sT1}, {64*7168}",
                 f"    s_add_u32 s{sT1}, s{sT1}, s{sWoff}"]
            ops.append(pre+[f"    s_add_u32 m0, s{sW1K}, {base}", f"    s_add_u32 s{sT2}, s{sT1}, {32*7168}",
                        f"    buffer_load_dwordx4 v{vX}, s[{X}:{X+3}], s{sT0} offen lds"])
            ops.append([f"    s_add_u32 m0, s{sW1K}, {base+4096}","    s_nop 0",f"    buffer_load_dwordx4 v{vWg}, s[{G}:{G+3}], s{sT1} offen lds"])
            ops.append([f"    s_add_u32 m0, s{sW1K}, {base+12288}","    s_nop 0",f"    buffer_load_dwordx4 v{vWu}, s[{U}:{U+3}], s{sT1} offen lds"])
            ops.append([f"    s_add_u32 m0, s{sW1K}, {base+8192}","    s_nop 0",f"    buffer_load_dwordx4 v{vWg}, s[{G}:{G+3}], s{sT2} offen lds"])
        else:
            ops.append([f"    s_add_u32 m0, s{sW1K}, {base}", f"    s_add_u32 s{sT0}, s{sXoff}, {c*128}",
                        f"    buffer_load_dwordx4 v{vX}, s[{X}:{X+3}], s{sT0} offen lds"])
            ops.append([f"    s_add_u32 m0, s{sW1K}, {base+4096}",f"    s_add_u32 s{sT1}, s{sWoff}, {c*64*7168}",f"    buffer_load_dwordx4 v{vWg}, s[{G}:{G+3}], s{sT1} offen lds"])
            ops.append([f"    s_add_u32 m0, s{sW1K}, {base+12288}","    s_nop 0",f"    buffer_load_dwordx4 v{vWu}, s[{U}:{U+3}], s{sT1} offen lds"])
            ops.append([f"    s_add_u32 m0, s{sW1K}, {base+8192}",f"    s_add_u32 s{sT2}, s{sWoff}, {(c*64+32)*7168}",f"    buffer_load_dwordx4 v{vWg}, s[{G}:{G+3}], s{sT2} offen lds"])
        ops.append([f"    s_add_u32 m0, s{sW1K}, {base+16384}","    s_nop 0",f"    buffer_load_dwordx4 v{vWu}, s[{U}:{U+3}], s{sT2} offen lds"])
        return ops
    a("    s_waitcnt lgkmcnt(0)")
    issued=[]
    for c in range(3):
        for op in chunk_ops(c):
            for l in op: a(l)
        issued.append(5)
    a(f"    v_bfe_u32 v{vT3}, v{vL}, 4, 1")
    a(f"    v_lshlrev_b32 v{vA}, 13, v{vT3}")
    a(f"    v_lshrrev_b32 v{vT3}, 5, v{vL}")
    a(f"    v_lshl_add_u32 v{vA}, v{vT3}, 10, v{vA}")
    a(f"    v_bfe_u32 v{vA2}, v{vL}, 2, 2")
    a(f"    v_lshl_add_u32 v{vA}, v{vA2}, 7, v{vA}")
    a(f"    v_and_b32 v{vA2}, 3, v{vT1}")
    a(f"    v_xor_b32 v{vA2}, v{vA2}, v{vT0}")
    a(f"    v_lshl_add_u32 v{vA}, v{vA2}, 5, v{vA}")
    a(f"    v_and_b32 v{vA2}, 3, v{vL}")
    a(f"    v_lshl_add_u32 v{vA}, v{vA2}, 3, v{vA}")
    a(f"    v_add_u32 v{vA}, 4096, v{vA}")
    a(f"    v_add_u32 v{vA2}, {2*SLOT}, v{vA}")
    a(f"    v_bfe_u32 v{vB}, v{vL}, 1, 3")
    a(f"    v_xor_b32 v{vB}, v{vB}, v{vT3}")
    a(f"    v_lshlrev_b32 v{vB}, 4, v{vB}")
    a(f"    v_and_b32 v{vT3}, 31, v{vL}")
    a(f"    v_lshl_add_u32 v{vB}, v{vT3}, 7, v{vB}")
    for st in range(1,4):
        a(f"    v_xor_b32 v{vB+st}, {st*32}, v{vB}")
    a(f"    v_bfe_u32 v{vT3}, v{vL}, 4, 1")
    a(f"    v_lshlrev_b32 v{vHsc}, 8, v{vT3}")
    a(f"    v_lshrrev_b32 v{vT3}, 5, v{vL}")
    a(f"    v_lshl_add_u32 v{vHsc}, v{vT3}, 6, v{vHsc}")
    a(f"    v_and_b32 v{vT3}, 15, v{vL}")
    a(f"    v_lshl_add_u32 v{vHsc}, v{vT3}, 2, v{vHsc}")
    a(f"    v_lshlrev_b32 v{vHs}, 2, v{vHsc}")
    common_setup()
    a(f"    s_mov_b32 s{sMask}, 0xffff0000")
    a(f"    s_mov_b32 s{sNl2e}, 0xbfb8aa3b")
    wdi=0
    for c in range(16):
        out=sum(issued[c+1:])
        a(f"    s_waitcnt vmcnt({out})")
        a("    s_barrier")
        if c==0: stamp(1)
        base=(c%4)*SLOT
        va,ab=(vA,base) if c%4<2 else (vA2,base-2*SLOT)
        for st in range(4):
            fb=FR+8*st
            a(f"    ds_read_b64_tr_b16 v[{fb}:{fb+1}], v{va} offset:{ab+st*2048}")
            a(f"    ds_read_b64_tr_b16 v[{fb+2}:{fb+3}], v{va} offset:{ab+st*2048+512}")
            a(f"    ds_read_b128 v[{fb+4}:{fb+7}], v{vB+st} offset:{base}")
        ops=[]
        if c+3<16:
            ops=chunk_ops(c+3); n=5
        elif wdi<7:
            n=min(7-wdi,5)
            for i in range(wdi,wdi+n):
                ops.append([f"    s_add_u32 m0, s{sW1K}, {i*4096}",f"    s_add_u32 s{sT0}, s{sWd}, {i*32*2048}",
                            f"    buffer_load_dwordx4 v{vWd}, s[{WD}:{WD+3}], s{sT0} offen lds"])
            wdi+=n
        else: n=0
        if c==tagchunk:
            ops.append([f"    buffer_load_dword v{vTag}, off, s[{DBG}:{DBG+3}], 0 sc1"]); n+=1
        issued.append(n)
        sched=[2,1,1,len(ops)]
        k=0
        for st in range(4):
            for _ in range(sched[st]):
                if k<len(ops):
                    for l in ops[k]: a(l)
                    k+=1
            a(f"    s_waitcnt lgkmcnt({9-3*st})")
            fb=FR+8*st
            src = "0" if (c==0 and st==0) else f"v[{ACC}:{ACC+15}]"
            a(f"    v_mfma_f32_32x32x16_bf16 v[{ACC}:{ACC+15}], v[{fb}:{fb+3}], v[{fb+4}:{fb+7}], {src}")
    stamp(2)
    a(f"    s_mul_i32 s{sT0}, s{sJ}, 14")
    a(f"    s_and_b32 s{sT1}, s{sS}, 14")
    a(f"    s_add_u32 s{sT0}, s{sT0}, s{sT1}")
    a(f"    s_lshr_b32 s{sT1}, s{sW}, 1")
    a(f"    s_add_u32 s{sT0}, s{sT0}, s{sT1}")
    a(f"    s_lshl_b32 s{sT0}, s{sT0}, 1")
    a(f"    s_add_u32 s{sT0}, s{sT0}, s{sSwap}")
    a(f"    s_lshl_b32 s{sT0}, s{sT0}, 2")
    a(f"    s_and_b32 s{sT1}, s{sW}, 1")
    a(f"    s_add_u32 s{sT0}, s{sT0}, s{sT1}")
    a(f"    s_lshl_b32 s{sT1}, s{sT0}, 9")
    a(f"    s_add_u32 s{sT1}, s{sT1}, {HD}")
    a(f"    s_lshl_b32 s{sT2}, s{sT0}, 7")
    a(f"    s_add_u32 s{sT2}, s{sT2}, {HC}")
    a(f"    v_readfirstlane_b32 s{sTag}, v{vTag}")
    a(f"    s_mov_b32 s{sSpin}, {SPIN}")
    a(f"    s_cmp_lg_u32 s{sTag}, 0")
    a("    s_cbranch_scc1 L_up_tag_ok")
    a("L_up_tag:")
    a(f"    buffer_load_dword v{vTag}, off, s[{DBG}:{DBG+3}], 0 sc1")
    a(f"    s_sub_u32 s{sSpin}, s{sSpin}, 1")
    a("    s_cbranch_scc1 L_end")
    a("    s_waitcnt vmcnt(0)")
    a(f"    v_readfirstlane_b32 s{sTag}, v{vTag}")
    a(f"    s_cmp_eq_u32 s{sTag}, 0")
    a("    s_cbranch_scc1 L_up_tag")
    a("L_up_tag_ok:")
    T=FR
    for i in range(4): a(f"    v_cvt_pk_bf16_f32 v{T+i}, v{ACC+2*i}, v{ACC+2*i+1}")
    for i in range(4): a(f"    v_cvt_pk_bf16_f32 v{T+4+i}, v{ACC+8+2*i}, v{ACC+8+2*i+1}")
    for i in range(4):
        a(f"    v_lshlrev_b32 v{ACC+2*i}, 16, v{T+i}")
        a(f"    v_and_b32 v{ACC+2*i+1}, s{sMask}, v{T+i}")
    for i in range(8): a(f"    v_mul_f32 v{T+8+i}, s{sNl2e}, v{ACC+i}")
    for i in range(8): a(f"    v_exp_f32 v{T+8+i}, v{T+8+i}")
    for i in range(4):
        a(f"    v_lshlrev_b32 v{ACC+8+2*i}, 16, v{T+4+i}")
        a(f"    v_and_b32 v{ACC+8+2*i+1}, s{sMask}, v{T+4+i}")
    for i in range(8): a(f"    v_add_f32 v{T+8+i}, 1.0, v{T+8+i}")
    for i in range(8): a(f"    v_rcp_f32 v{T+8+i}, v{T+8+i}")
    a("    s_nop 0")
    for i in range(8): a(f"    v_mul_f32 v{ACC+i}, v{ACC+i}, v{T+8+i}")
    for i in range(4): a(f"    v_cvt_pk_bf16_f32 v{T+i}, v{ACC+2*i}, v{ACC+2*i+1}")
    for i in range(4):
        a(f"    v_lshlrev_b32 v{ACC+2*i}, 16, v{T+i}")
        a(f"    v_and_b32 v{ACC+2*i+1}, s{sMask}, v{T+i}")
    for i in range(8): a(f"    v_mul_f32 v{ACC+i}, v{ACC+i}, v{ACC+8+i}")
    for i in range(4): a(f"    v_cvt_pk_bf16_f32 v{T+32+i}, v{ACC+2*i}, v{ACC+2*i+1}")
    HV=T+32
    a(f"    buffer_store_dwordx4 v[{HV}:{HV+3}], v{vHs}, s[{WS}:{WS+3}], s{sT1} offen sc1")
    a(f"    v_lshl_add_u32 v{vT0}, v{HV+3}, 1, v{HV+2}")
    a(f"    v_lshl_add_u32 v{vT0}, v{vT0}, 1, v{HV+1}")
    a(f"    v_lshl_add_u32 v{vT0}, v{vT0}, 1, v{HV}")
    a(f"    v_xor_b32 v{vT0}, s{sTag}, v{vT0}")
    a(f"    buffer_store_dword v{vT0}, v{vHsc}, s[{WS}:{WS+3}], s{sT2} offen sc1")
    stamp(3)
    a("    s_waitcnt vmcnt(2)")
    a("    s_branch L_p2")

    a("L_pf:")
    a(f"    s_sub_u32 s{sSwap}, s{sS}, 14")
    a(f"    s_cmp_eq_u32 s{sW}, 0")
    a("    s_cbranch_scc1 L_pf_w0")
    a("    s_cmp_lg_u32 s2, 112")
    a("    s_cbranch_scc1 L_pf_setup")
    a(f"    s_cmp_lg_u32 s{sW}, 1")
    a("    s_cbranch_scc1 L_pf_setup")
    a("    s_waitcnt lgkmcnt(0)")
    a(f"    buffer_load_dword v{vTag}, off, s[{WS}:{WS+3}], 0 sc1")
    a("    s_waitcnt vmcnt(0)")
    a(f"    v_add_u32 v{vTag}, 0x01010101, v{vTag}")
    a(f"    v_cmp_eq_u32 vcc, 0, v{vTag}")
    a(f"    v_mov_b32 v{vT3}, 0x02020202")
    a("    s_mov_b64 exec, 1")
    a(f"    v_cndmask_b32 v{vTag}, v{vTag}, v{vT3}, vcc")
    a(f"    buffer_store_dword v{vTag}, off, s[{DBG}:{DBG+3}], 0 sc1")
    a(f"    buffer_store_dword v{vTag}, off, s[{WS}:{WS+3}], 0 sc1")
    a("    s_mov_b64 exec, -1")
    a("    s_branch L_pf_setup")
    a("L_pf_w0:")
    a(f"    v_min_u32 v{vT3}, 62, v{vL}")
    a(f"    v_mul_u32_u24 v{vWg}, 9363, v{vT3}")
    a(f"    v_lshrrev_b32 v{vWg}, 16, v{vWg}")
    a(f"    v_mul_u32_u24 v{vWu}, 7, v{vWg}")
    a(f"    v_sub_u32 v{vT3}, v{vT3}, v{vWu}")
    a(f"    v_mul_u32_u24 v{vWg}, 7168, v{vWg}")
    a(f"    v_lshl_add_u32 v{vWg}, v{vT3}, 7, v{vWg}")
    a(f"    v_lshlrev_b32 v{vX}, 11, v{vL}")
    a(f"    s_mul_i32 s{sWoff}, s{sJ}, 896")
    a(f"    s_mul_i32 s{sT0}, s{sSwap}, {9*7168}")
    a(f"    s_add_u32 s{sWoff}, s{sWoff}, s{sT0}")
    a(f"    s_add_u32 s{sWoff}, s{sWoff}, {row0*7168}")
    a(f"    s_lshl_b32 s{sXoff}, s{sSwap}, 7")
    a(f"    s_cmp_ge_u32 s{sSwap}, 16")
    a(f"    s_cselect_b32 s{sXoff}, 0x20000, s{sXoff}")
    a("    s_waitcnt lgkmcnt(0)")
    a(f"    buffer_load_dword v{vDum}, v{vX}, s[{X}:{X+3}], s{sXoff} offen")
    R=-(-(1024-row0)//162)
    for i in range(R):
        a(f"    buffer_load_dword v{vDum}, v{vWg}, s[{G}:{G+3}], s{sWoff} offen")
        a(f"    buffer_load_dword v{vDum}, v{vWg}, s[{U}:{U+3}], s{sWoff} offen")
        if i<R-1: a(f"    s_add_u32 s{sWoff}, s{sWoff}, {162*7168}")
    a(f"    s_mul_i32 s{sT1}, s{sJ}, {448*2048}")
    for r in range(3):
        a(f"    s_add_u32 s{sT0}, s{sSwap}, {18*r}")
        a(f"    s_lshl_b32 s{sT0}, s{sT0}, 6")
        a(f"    v_add_u32 v{vT3}, s{sT0}, v{vL}")
        a(f"    v_mul_u32_u24 v{vWg}, 4682, v{vT3}")
        a(f"    v_lshrrev_b32 v{vWg}, 16, v{vWg}")
        a(f"    v_mul_u32_u24 v{vWu}, 14, v{vWg}")
        a(f"    v_sub_u32 v{vWu}, v{vT3}, v{vWu}")
        a(f"    v_lshlrev_b32 v{vWg}, 11, v{vWg}")
        a(f"    v_cmp_gt_u32 vcc, 3136, v{vT3}")
        a(f"    v_lshl_add_u32 v{vWg}, v{vWu}, 7, v{vWg}")
        a("    s_nop 0")
        a(f"    v_cndmask_b32 v{vWg}, -16, v{vWg}, vcc")
        a(f"    buffer_load_dword v{vDum}, v{vWg}, s[{WD}:{WD+3}], s{sT1} offen")
    a("L_pf_setup:")
    common_setup()
    a("    s_waitcnt lgkmcnt(0)")
    a("    s_barrier")
    stamp(1)
    wd_dma(0,7,wdflags)
    a(f"    s_mov_b32 s{sSpin}, {SPIN}")
    a("L_pf_tag:")
    a(f"    buffer_load_dword v{vTag}, off, s[{DBG}:{DBG+3}], 0 sc1")
    a(f"    s_sub_u32 s{sSpin}, s{sSpin}, 1")
    a("    s_cbranch_scc1 L_end")
    a("    s_waitcnt vmcnt(0)")
    a(f"    v_readfirstlane_b32 s{sTag}, v{vTag}")
    a(f"    s_cmp_eq_u32 s{sTag}, 0")
    a("    s_cbranch_scc1 L_pf_tag")
    stamp(2); stamp(3)

    a("L_p2:")
    a("    s_barrier")
    for cc in range(7):
        for ct in range(4):
            for jj in range(2):
                r=WF+(cc*4+ct)*4+2*jj
                a(f"    ds_read_b64_tr_b16 v[{r}:{r+1}], v{vD+ct} offset:{cc*4096+jj*1024}")
    for r in range(4):
        a(f"    s_bfe_u32 s{sTB+r}, s{sTag}, {0x80000+8*r}")
    a(f"    s_mov_b32 s{sSpin}, {SPIN}")
    if stamps:
        a("    s_waitcnt lgkmcnt(0)")
        stamp(4)
    a("L_h:")
    for cc in range(7):
        a(f"    buffer_load_dwordx4 v[{FR+4*cc}:{FR+4*cc+3}], v{vL16}, s[{WS}:{WS+3}], s{sHd+cc} offen sc1")
        a(f"    buffer_load_dword v{CK+cc}, v{vL4}, s[{WS}:{WS+3}], s{sHc0 if cc<4 else sHc1} offen offset:{(cc%4)*1024} sc1")
    a(f"    s_sub_u32 s{sSpin}, s{sSpin}, 1")
    a("    s_cbranch_scc1 L_end")
    a("    s_waitcnt lgkmcnt(0)")
    for cc in range(7):
        a(f"    s_waitcnt vmcnt({12-2*cc})")
        h=FR+4*cc
        for ct in range(4):
            r=WF+(cc*4+ct)*4
            src="0" if cc==0 else f"v[{ACC+4*ct}:{ACC+4*ct+3}]"
            a(f"    v_mfma_f32_16x16x32_bf16 v[{ACC+4*ct}:{ACC+4*ct+3}], v[{h}:{h+3}], v[{r}:{r+3}], {src}")
            if ct==0: a(f"    v_lshl_add_u32 v{vT0}, v{h+3}, 1, v{h+2}")
            if ct==1: a(f"    v_lshl_add_u32 v{vT0}, v{vT0}, 1, v{h+1}")
            if ct==2: a(f"    v_lshl_add_u32 v{vT0}, v{vT0}, 1, v{h}")
        if cc==0:
            a(f"    v_bitop3_b32 v{vAcc}, v{vT0}, v{CK+cc}, v{vTag} bitop3:0x96")
        else:
            a(f"    v_bitop3_b32 v{vT0}, v{vT0}, v{CK+cc}, v{vTag} bitop3:0x96")
            a(f"    v_or_b32 v{vAcc}, v{vAcc}, v{vT0}")
    a(f"    v_cmp_ne_u32 vcc, 0, v{vAcc}")
    a("    s_cbranch_vccnz L_h")
    stamp(5)
    a("    s_nop 4")
    for ct in range(4):
        for r in range(4):
            a(f"    v_perm_b32 v{FR+4*ct+r}, v{ACC+4*ct+r}, v{vTag}, s{sSel+r}")
        a(f"    buffer_store_dwordx4 v[{FR+4*ct}:{FR+4*ct+3}], v{vPs}, s[{WS}:{WS+3}], s{sP+ct} offen sc1")
    a(f"    s_mov_b32 s{sSpin}, {SPIN}")
    stamp(6)
    R0=WF
    a("L_r:")
    for i in range(4):
        a(f"    buffer_load_dwordx4 v[{R0+4*i}:{R0+4*i+3}], v{vL16}, s[{WS}:{WS+3}], s{sRed} offen offset:{i*1024} sc1")
    a(f"    s_sub_u32 s{sSpin}, s{sSpin}, 1")
    a("    s_cbranch_scc1 L_end")
    for i in range(4):
        a(f"    s_waitcnt vmcnt({3-i})")
        for r in range(4):
            a(f"    v_xor_b32 v{R0+4*i+r}, s{sTB+r}, v{R0+4*i+r}")
        if i==0:
            a(f"    v_or3_b32 v{vAcc}, v{R0}, v{R0+1}, v{R0+2}")
            a(f"    v_or_b32 v{vAcc}, v{vAcc}, v{R0+3}")
        else:
            a(f"    v_or3_b32 v{vAcc}, v{vAcc}, v{R0+4*i}, v{R0+4*i+1}")
            a(f"    v_or3_b32 v{vAcc}, v{vAcc}, v{R0+4*i+2}, v{R0+4*i+3}")
            for r in range(4):
                s0 = R0+r if i==1 else ACC+r
                a(f"    v_add_f32 v{ACC+r}, v{s0}, v{R0+4*i+r}")
    a(f"    v_and_b32 v{vAcc}, 0xff, v{vAcc}")
    a(f"    v_cmp_ne_u32 vcc, 0, v{vAcc}")
    a("    s_cbranch_vccnz L_r")
    stamp(7)
    a(f"    v_permlane32_swap_b32 v{ACC}, v{ACC+2}")
    a(f"    v_permlane32_swap_b32 v{ACC+1}, v{ACC+3}")
    a("    s_nop 0")
    a(f"    v_add_f32 v{ACC}, v{ACC}, v{ACC+2}")
    a(f"    v_add_f32 v{ACC+1}, v{ACC+1}, v{ACC+3}")
    a("    s_nop 1")
    a(f"    v_permlane16_swap_b32 v{ACC}, v{ACC+1}")
    a("    s_nop 1")
    a(f"    v_add_f32 v{ACC}, v{ACC}, v{ACC+1}")
    a(f"    v_cvt_pk_bf16_f32 v{ACC}, v{ACC}, v{ACC}")
    a(f"    buffer_store_short v{ACC}, v{vOut}, s[{OUT}:{OUT+3}], s{sOut} offen {outflags}")
    if stamps:
        a("    s_waitcnt vmcnt(0)")
        stamp(8)
        a(f"    s_getreg_b32 s{sT1}, hwreg(HW_REG_XCC_ID)")
        a(f"    v_mov_b32 v{FR}, s{sST+2*NST}")
        for i in range(1,NST):
            a(f"    s_sub_u32 s{sT0}, s{sST+2*i}, s{sST}")
            a(f"    v_mov_b32 v{FR+i}, s{sT0}")
        a(f"    v_mov_b32 v{FR+NST}, s{sT1}")
        a(f"    s_lshl_b32 s{sT0}, s2, 2")
        a(f"    s_add_u32 s{sT0}, s{sT0}, s{sW}")
        a(f"    s_lshl_b32 s{sT0}, s{sT0}, 6")
        a(f"    s_add_u32 s{sT0}, s{sT0}, {STAMP_OFF}")
        a("    s_mov_b64 exec, 1")
        for q in range(3):
            a(f"    buffer_store_dwordx4 v[{FR+4*q}:{FR+4*q+3}], off, s[{WS}:{WS+3}], s{sT0} offset:{16*q}")
    a("L_end:")
    a("    s_endpgm")
    a('.section .rodata,"a"')
    a(".p2align 6")
    kernel_desc(a,NAME,NV,96,NV)
    open(path,"w").write(a.text())

if __name__=="__main__":
    gen("pf.s"); gen("pf_st.s",stamps=True)
```

```python
import re,sys
from asmlib import *
STAMP_OFF=128<<20
NAME="standalone__swiglu_ffn__sampling_kernel"
def delay_kernel(n, field, amp):
    a=Asm(); kernel_begin(a,"delay_kernel")
    a("    s_cmp_ge_u32 s2, 1\n    s_cbranch_scc1 L_dl_end")
    a("    s_load_dwordx2 s[4:5], s[0:1], 48\n    s_waitcnt lgkmcnt(0)")
    srd(a,12,4,256<<20)
    a("    v_lshlrev_b32 v1, 6, v0\n    v_mov_b32 v2, -1\n    v_mov_b32 v3, 0")
    a(f"    s_mov_b32 s16, {STAMP_OFF}")
    a(f"    s_mov_b32 s17, {n//64}")
    a("L_dl_rd:")
    a("    buffer_load_dword v4, v1, s[12:15], s16 offen")
    a(f"    buffer_load_dword v5, v1, s[12:15], s16 offen offset:{4*field}")
    a("    s_waitcnt vmcnt(0)")
    if field not in (0,10):
        a("    v_mul_u32_u24 v5, 2789, v5\n    v_lshrrev_b32 v5, 16, v5\n    v_add_u32 v5, v5, v4")
    a("    v_min_u32 v2, v2, v4\n    v_max_u32 v3, v3, v5")
    a("    s_add_u32 s16, s16, 4096\n    s_sub_u32 s17, s17, 1\n    s_cmp_lg_u32 s17, 0\n    s_cbranch_scc1 L_dl_rd")
    a("    s_mov_b32 s6, -1\n    s_mov_b32 s7, 0\n    s_nop 1")
    for l in range(64):
        a(f"    v_readlane_b32 s18, v2, {l}\n    v_readlane_b32 s19, v3, {l}\n    s_nop 0\n    s_min_u32 s6, s6, s18\n    s_max_u32 s7, s7, s19")
    a("    s_sub_u32 s6, s7, s6")
    a("    s_memrealtime s[8:9]\n    s_waitcnt lgkmcnt(0)")
    a("    s_min_u32 s6, s6, 5000")
    a(f"    s_mul_i32 s6, s6, {amp}")
    a("L_dl_loop:\n    s_memrealtime s[10:11]\n    s_waitcnt lgkmcnt(0)\n    s_sub_u32 s10, s10, s8\n    s_cmp_lt_u32 s10, s6\n    s_cbranch_scc1 L_dl_loop")
    a("L_dl_end:\n    s_endpgm")
    return a.text()
def wrap(src,dst,field,amp=100):
    s=open(src).read()
    m=re.search(r"; @launch (grid=\((\d+),1,1\) block=\((\d+),1,1\) lds=\d+)\n",s)
    n=int(m.group(2))*int(m.group(3))//64
    s=s.replace(m.group(0),f"; @launch kernel={NAME} {m.group(1)}\n; @launch kernel=delay_kernel grid=(1,1,1) block=(64,1,1) lds=0\n")
    d=Asm(); d(".p2align 6"); kernel_desc(d,"delay_kernel",8,40,8)
    s=s.replace('.section .rodata,"a"\n', delay_kernel(n,field,amp)+'.section .rodata,"a"\n')+d.text()
    open(dst,"w").write(s)
if __name__=="__main__":
    src=sys.argv[1]
    for f in sys.argv[2:]:
        wrap(src, src[:-2]+f"_f{f}.s", int(f), 100 if int(f)>=0 else 0)
```

```python
import sys
from asmlib import *
NAME="standalone__swiglu_ffn__sampling_kernel"
M,D,F=64,1024,3584
MK=0x1000; FLG=0x2000; HD=0x10000; HC=0x80000; PB=0x100000; HB=0x400000; WSN=0x500000
STAMP_OFF=128<<20
SPIN=1<<18
SLOT=20480
RS=57344

def gen(path, stamps=False, row0=0, wdflags="", outflags="", rsleep=0, N0=24, sched=(2,1,1,1), rwait=True, codepf=True,
        prost=False, c3help=True, dsched=(2,2,0,0), wdn=(5,5,0), setup_first=True, inter=True, pre=2, strm=False, perm=True, xstage=1, prew=None, wdepi=False, stfl='sc1', rdfl='sc1', warm=('retry',), split=7, xlead=3, c2late=False, earlyw=True, trim=True, dlead=1, fuse=0, dbg=''):
    a=Asm()
    a(HEADER.rstrip())
    a("; @launch grid=(256,1,1) block=(256,1,1) lds=81920")
    a('.amdgcn_target "amdgcn-amd-amdhsa--gfx950"')
    a(".text")
    kernel_begin(a,NAME)
    X,G,U,WD,OUT,DBG,WS=4,8,12,16,20,24,28
    sJ,sS,sW,sW1K=32,33,34,35
    sT0,sT1,sT2=36,37,38
    sWoff,sXoff,sSwap=39,40,41
    sWdA,sWdB,sMA,sMB=42,43,44,45
    sTag=46
    sTB=48
    sSel=52
    sHd0,sHd1,sHc=56,57,58
    sP,sRed,sOut=59,60,61
    sMask,sNl2e=62,63
    sHs,sHsc,s4K,sR32=64,65,66,67
    sPC=68
    sMk,sFs,sFp,sSpin=70,71,72,73
    sE,sDv=74,75
    sST=76
    sFl=4
    NST=10
    vL=1; vT0,vT1,vT2,vT3=2,3,4,5
    vWg,vWu,vX,vA,vA2=6,7,8,9,10
    vB=11
    vWd=15; vD=16
    vTag=20; vL16=21; vDum=22; vRw=23
    vHs=24; vHsc=25; vPs=26; vOut=27; vAcc=28; vH16=29; vH4=30; vRr=31
    ACC=32
    FR=48
    CK=76
    WF=84
    FR2=84
    HV=196; vHk=200; vMk=201; vMe=202; vE=203
    NV=208
    def rawstamp(i):
        a(f"    s_memtime s[{sST+2*i}:{sST+2*i+1}]")
        a("    s_waitcnt lgkmcnt(0)")
    def pstamp(*ii):
        if stamps and prost:
            for i in ii: rawstamp(i)
    def stamp(*ii):
        for i in ii:
            if stamps and not (prost and i in (2,3,4,5,6,9)) and not (strm and i!=8): rawstamp(i)
    def emit(ops):
        for op in ops:
            for l in op: a(l)
    if stamps:
        a(f"    s_memrealtime s[{sST+2*NST}:{sST+2*NST+1}]")
        a(f"    s_memtime s[{sST}:{sST+1}]")
    a(f"    s_lshr_b32 s{sS}, s2, 3")
    a(f"    s_cmp_ge_u32 s{sS}, 32")
    a("    s_cbranch_scc1 L_end")
    for i,b in ((0,X),(1,G),(2,U),(6,WS)):
        a(f"    s_load_dwordx2 s[{b}:{b+1}], s[0:1], {8*i}")
    if codepf:
        a(f"    s_getpc_b64 s[{sPC}:{sPC+1}]")
        a("L_pc:")
        a(f"    v_lshlrev_b32 v{vT3}, 7, v0")
        a(f"    v_min_u32 v{vT3}, L_last-L_pc, v{vT3}")
        a(f"    global_load_dword v{vDum}, v{vT3}, s[{sPC}:{sPC+1}]")
    ncp=1 if codepf else 0
    a(f"    v_lshrrev_b32 v{vT0}, 6, v0")
    a(f"    v_and_b32 v{vL}, 63, v0")
    a(f"    s_and_b32 s{sJ}, s2, 7")
    a(f"    v_readfirstlane_b32 s{sW}, v{vT0}")
    a(f"    s_mov_b32 s{X+3}, 0x20000")
    a(f"    s_mov_b32 s{X+2}, s{X+3}")
    a(f"    s_mov_b32 s{G+2}, {D*F*2}")
    a(f"    s_mov_b32 s{G+3}, s{X+3}")
    a(f"    s_mov_b32 s{U+2}, s{G+2}")
    a(f"    s_mov_b32 s{U+3}, s{X+3}")
    a(f"    s_mov_b32 s{WS+2}, {(256<<20) if stamps else WSN}")
    a(f"    s_mov_b32 s{WS+3}, s{X+3}")
    a(f"    v_lshrrev_b32 v{vT1}, 3, v{vL}")
    a(f"    v_and_b32 v{vT2}, 7, v{vL}")
    a(f"    s_lshl_b32 s{sW1K}, s{sW}, 10")
    a(f"    s_movk_i32 s{s4K}, 4096")
    a(f"    s_cmp_lt_u32 s{sS}, 14")
    a("    s_cbranch_scc1 L_up")
    if perm:
        a(f"    s_sub_u32 s{sSwap}, s{sS}, 12")
        a(f"    s_cmp_ge_u32 s{sSwap}, 18")
        a(f"    s_cselect_b32 s{sT0}, 18, 0")
        a(f"    s_sub_u32 s{sSwap}, s{sSwap}, s{sT0}")
        a(f"    s_movk_i32 s{sT1}, 0x90")
        a(f"    s_bitcmp1_b32 s{sT1}, s{sSwap}")
        a(f"    s_cselect_b32 s{sT0}, 3, 0")
        a(f"    s_mov_b32 s{sT1}, 0x8020")
        a(f"    s_bitcmp1_b32 s{sT1}, s{sSwap}")
        a(f"    s_cselect_b32 s{sT0}, 10, s{sT0}")
        a(f"    s_xor_b32 s{sSwap}, s{sSwap}, s{sT0}")
    else:
        a(f"    s_sub_u32 s{sSwap}, s{sS}, 14")
    a(f"    s_cmp_eq_u32 s{sW}, 0")
    a("    s_cbranch_scc1 L_pf_w0")
    a("    s_waitcnt lgkmcnt(0)")
    a(f"    buffer_load_dword v{vE}, off, s[{WS}:{WS+3}], 0 sc1")
    a("    s_branch L_pf_other")
    a("L_pf_w0:")
    if split:
        rr=9*split
        R=-(-(1024-row0)//rr)
        a(f"    v_min_u32 v{vT3}, {7*split-1}, v{vL}")
        a(f"    v_mul_u32_u24 v{vWg}, 37, v{vT3}")
        a(f"    v_lshrrev_b32 v{vWg}, 8, v{vWg}")
        a(f"    v_mul_u32_u24 v{vWg}, {7168-7*128}, v{vWg}")
        a(f"    v_lshl_add_u32 v{vWg}, v{vT3}, 7, v{vWg}")
        a(f"    v_lshlrev_b32 v{vX}, 11, v{vL}")
        a(f"    s_mul_i32 s{sWoff}, s{sJ}, 896")
        a(f"    s_lshr_b32 s{sT0}, s{sSwap}, 1")
        a(f"    s_mul_i32 s{sT0}, s{sT0}, {split*7168}")
        a(f"    s_add_u32 s{sWoff}, s{sWoff}, s{sT0}")
        if row0: a(f"    s_add_u32 s{sWoff}, s{sWoff}, {row0*7168}")
        a(f"    s_lshl_b32 s{sXoff}, s{sSwap}, 7")
        a(f"    s_cmp_ge_u32 s{sSwap}, 16")
        a(f"    s_cselect_b32 s{sXoff}, s{X+2}, s{sXoff}")
        a(f"    s_mov_b32 s{sT1}, {R}")
        a(f"    s_mul_i32 s{sT2}, s{sSwap}, {int(64*64/rr)}")
        a(f"    s_lshr_b32 s{sT2}, s{sT2}, 6")
        a(f"    s_sub_i32 s{sT2}, s{sT2}, {xlead}")
        a(f"    s_max_i32 s{sT2}, s{sT2}, 0")
        a(f"    s_min_i32 s{sT2}, s{sT2}, {R-1}")
        a(f"    s_sub_u32 s{sT2}, {R}, s{sT2}")
        a(f"    s_bitcmp1_b32 s{sSwap}, 0")
        a("    s_waitcnt lgkmcnt(0)")
        pstamp(2)
        a(f"    s_cselect_b64 s[{G}:{G+1}], s[{U}:{U+1}], s[{G}:{G+1}]")
        a(f"    buffer_load_dword v{vE}, off, s[{WS}:{WS+3}], 0 sc1")
        a("L_pf_loop:")
        a(f"    s_cmp_lg_u32 s{sT1}, s{sT2}")
        a("    s_cbranch_scc1 L_pf_nox")
        a(f"    buffer_load_dword v{vDum}, v{vX}, s[{X}:{X+3}], s{sXoff} offen")
        a("L_pf_nox:")
        a(f"    buffer_load_dword v{vDum}, v{vWg}, s[{G}:{G+3}], s{sWoff} offen")
        a(f"    s_add_u32 s{sWoff}, s{sWoff}, {rr*7168}")
        a(f"    s_sub_u32 s{sT1}, s{sT1}, 1")
        a(f"    s_cmp_lg_u32 s{sT1}, 0")
        a("    s_cbranch_scc1 L_pf_loop")
        npf=R+1
    else:
        a(f"    v_min_u32 v{vT3}, 62, v{vL}")
        a(f"    v_mul_u32_u24 v{vWg}, 37, v{vT3}")
        a(f"    v_lshrrev_b32 v{vWg}, 8, v{vWg}")
        a(f"    v_mul_u32_u24 v{vWg}, {7168-7*128}, v{vWg}")
        a(f"    v_lshl_add_u32 v{vWg}, v{vT3}, 7, v{vWg}")
        a(f"    v_lshlrev_b32 v{vX}, 11, v{vL}")
        a(f"    s_mul_i32 s{sWoff}, s{sJ}, 896")
        a(f"    s_mul_i32 s{sT0}, s{sSwap}, {9*7168}")
        a(f"    s_add_u32 s{sWoff}, s{sWoff}, s{sT0}")
        if row0: a(f"    s_add_u32 s{sWoff}, s{sWoff}, {row0*7168}")
        a(f"    s_lshl_b32 s{sXoff}, s{sSwap}, 7")
        a(f"    s_cmp_ge_u32 s{sSwap}, 16")
        a(f"    s_cselect_b32 s{sXoff}, s{X+2}, s{sXoff}")
        R=-(-(1024-row0)//162)
        a(f"    s_mov_b32 s{sT1}, {R}")
        if xstage:
            a(f"    s_mul_i32 s{sT2}, s{sSwap}, 13")
            a(f"    s_lshr_b32 s{sT2}, s{sT2}, 5")
            a(f"    s_sub_i32 s{sT2}, s{sT2}, {xstage}")
            a(f"    s_max_i32 s{sT2}, s{sT2}, 0")
            a(f"    s_sub_u32 s{sT2}, {R}, s{sT2}")
        a("    s_waitcnt lgkmcnt(0)")
        pstamp(2)
        if not xstage: a(f"    buffer_load_dword v{vDum}, v{vX}, s[{X}:{X+3}], s{sXoff} offen")
        a(f"    buffer_load_dword v{vE}, off, s[{WS}:{WS+3}], 0 sc1")
        a("L_pf_loop:")
        if xstage:
            a(f"    s_cmp_lg_u32 s{sT1}, s{sT2}")
            a("    s_cbranch_scc1 L_pf_nox")
            a(f"    buffer_load_dword v{vDum}, v{vX}, s[{X}:{X+3}], s{sXoff} offen")
            a("L_pf_nox:")
        a(f"    buffer_load_dword v{vDum}, v{vWg}, s[{G}:{G+3}], s{sWoff} offen")
        a(f"    buffer_load_dword v{vDum}, v{vWg}, s[{U}:{U+3}], s{sWoff} offen")
        a(f"    s_add_u32 s{sWoff}, s{sWoff}, {162*7168}")
        a(f"    s_sub_u32 s{sT1}, s{sT1}, 1")
        a(f"    s_cmp_lg_u32 s{sT1}, 0")
        a("    s_cbranch_scc1 L_pf_loop")
        npf=2*R+(1 if xstage else 0)
    pstamp(3)
    a("    s_branch L_pf_rest")

    def late_kernargs():
        for i,b in ((3,WD),(4,OUT),(5,DBG)):
            a(f"    s_load_dwordx2 s[{b}:{b+1}], s[0:1], {8*i}")
        a(f"    s_mov_b32 s{WD+2}, s{G+2}")
        a(f"    s_mov_b32 s{WD+3}, s{X+3}")
        a(f"    s_mov_b32 s{OUT+2}, s{X+3}")
        a(f"    s_mov_b32 s{OUT+3}, s{X+3}")
        a(f"    s_movk_i32 s{DBG+2}, 256")
        a(f"    s_mov_b32 s{DBG+3}, s{X+3}")
    def common_setup():
        a(f"    v_and_b32 v{vT3}, 6, v{vT1}")
        a(f"    v_xor_b32 v{vT3}, v{vT3}, v{vT2}")
        a(f"    v_lshlrev_b32 v{vT3}, 4, v{vT3}")
        a(f"    v_lshl_add_u32 v{vWd}, v{vT1}, 11, v{vT3}")
        a(f"    s_mul_i32 s{sWdA}, s{sJ}, {448*2048}")
        a(f"    s_and_b32 s{sT0}, s{sS}, 15")
        a(f"    s_lshl_b32 s{sT0}, s{sT0}, 7")
        a(f"    s_add_u32 s{sWdA}, s{sWdA}, s{sT0}")
        a(f"    s_lshl_b32 s{sT1}, s{sW}, 14")
        a(f"    s_add_u32 s{sWdA}, s{sWdA}, s{sT1}")
        a(f"    s_lshr_b32 s{sT2}, s{sS}, 4")
        a(f"    s_lshl_b32 s{sOut}, s{sT2}, 16")
        a(f"    s_add_u32 s{sOut}, s{sOut}, s{sT0}")
        a(f"    s_lshl_b32 s{sT0}, s{sJ}, 13")
        a(f"    s_add_u32 s{sOut}, s{sOut}, s{sT0}")
        a(f"    s_lshl_b32 s{sT0}, s{sW}, 5")
        a(f"    s_add_u32 s{sOut}, s{sOut}, s{sT0}")
        a(f"    s_lshr_b32 s{sT0}, s{sW}, 1")
        a(f"    s_lshl_b32 s{sT1}, s{sJ}, 1")
        a(f"    s_add_u32 s{sT1}, s{sT1}, s{sT2}")
        a(f"    s_lshl_b32 s{sT1}, s{sT1}, 1")
        a(f"    s_and_b32 s{sT2}, s{sW}, 1")
        a(f"    s_add_u32 s{sT1}, s{sT1}, s{sT2}")
        a(f"    s_lshl_b32 s{sT1}, s{sT1}, 1")
        a(f"    s_add_u32 s{sT1}, s{sT1}, s{sT0}")
        a(f"    s_mul_i32 s{sT1}, s{sT1}, 7")
        a(f"    s_lshl_b32 s{sHc}, s{sT1}, 8")
        a(f"    s_add_u32 s{sHc}, s{sHc}, {HC}")
        a(f"    s_lshl_b32 s{sHd0}, s{sT1}, 10")
        a(f"    s_add_u32 s{sHd0}, s{sHd0}, {HD}")
        a(f"    s_add_u32 s{sHd1}, s{sHd0}, s{s4K}")
        a(f"    s_lshl_b32 s{sRed}, s{sS}, 16")
        a(f"    s_add_u32 s{sRed}, s{sRed}, {PB}")
        a(f"    s_lshl_b32 s{sT2}, s{sT2}, 15")
        a(f"    s_add_u32 s{sP}, s{sRed}, s{sT2}")
        a(f"    s_lshl_b32 s{sT2}, s{sT0}, 12")
        a(f"    s_add_u32 s{sP}, s{sP}, s{sT2}")
        a(f"    s_lshl_b32 s{sT2}, s{sJ}, 8")
        a(f"    s_add_u32 s{sP}, s{sP}, s{sT2}")
        a(f"    s_lshl_b32 s{sT2}, s{sJ}, 13")
        a(f"    s_add_u32 s{sRed}, s{sRed}, s{sT2}")
        a(f"    s_lshl_b32 s{sT2}, s{sW}, 11")
        a(f"    s_add_u32 s{sRed}, s{sRed}, s{sT2}")
        a(f"    s_mov_b32 s{sSel}, 0x07060500")
        for r in range(1,4):
            a(f"    s_add_u32 s{sSel+r}, s{sSel}, {r}")
        a(f"    v_lshlrev_b32 v{vL16}, 4, v{vL}")
        a(f"    v_lshlrev_b32 v{vH4}, 2, v{vL}")
        a(f"    v_mov_b32 v{vH16}, v{vL16}")
        a(f"    s_add_u32 s{sT2}, s{sT2}, {RS}")
        a(f"    v_add_u32 v{vRw}, s{sT2}, v{vL16}")
        a(f"    v_xor_b32 v{vRr}, s{s4K}, v{vRw}")
        a(f"    v_lshrrev_b32 v{vT0}, 5, v{vL}")
        a(f"    v_lshlrev_b32 v{vT0}, 11, v{vT0}")
        a(f"    v_bfe_u32 v{vT3}, v{vL}, 2, 3")
        a(f"    v_lshl_add_u32 v{vT0}, v{vT3}, 7, v{vT0}")
        a(f"    v_and_b32 v{vT3}, 3, v{vL}")
        a(f"    v_lshl_add_u32 v{vT0}, v{vT3}, 3, v{vT0}")
        a(f"    s_and_b32 s{sT1}, s{sW}, 2")
        a(f"    v_and_b32 v{vT3}, 3, v{vT1}")
        a(f"    v_xor_b32 v{vT3}, s{sT1}, v{vT3}")
        a(f"    v_lshl_add_u32 v{vT0}, v{vT3}, 5, v{vT0}")
        a(f"    s_mul_i32 s{sT0}, s{sT0}, 28672")
        a(f"    v_add_u32 v{vD}, s{sT0}, v{vT0}")
        for ct in range(1,4):
            a(f"    v_xor_b32 v{vD+ct}, {ct*32}, v{vD}")
        a(f"    v_lshrrev_b32 v{vT0}, 4, v{vL}")
        a(f"    v_and_b32 v{vT3}, 15, v{vL}")
        a(f"    v_lshlrev_b32 v{vPs}, 13, v{vT0}")
        a(f"    v_lshl_add_u32 v{vPs}, v{vT3}, 4, v{vPs}")
        a(f"    v_lshlrev_b32 v{vOut}, 11, v{vT0}")
        a(f"    v_lshl_add_u32 v{vOut}, v{vT3}, 1, v{vOut}")
        a(f"    s_mov_b32 s{sSpin}, {SPIN}")
        a(f"    s_lshl_b32 s{sMk}, s{sJ}, 7")
        a(f"    s_add_u32 s{sMk}, s{sMk}, {MK}")
        a(f"    v_and_b32 v{vMk}, 31, v{vL}")
        a(f"    v_lshl_add_u32 v{vMk}, v{vMk}, 2, s{sMk}")
        a(f"    s_lshl_b32 s{sT0}, s{sS}, 2")
        a(f"    s_add_u32 s{sMk}, s{sMk}, s{sT0}")
    def tag_from():
        a(f"    v_readfirstlane_b32 s{sE}, v{vE}")
        a(f"    v_readfirstlane_b32 s{sDv}, v{vTag}")
        a("    s_nop 0")
        a(f"    s_add_u32 s{sE}, s{sE}, 0x01010101")
        a(f"    s_cmp_eq_u32 s{sE}, 0")
        a(f"    s_cselect_b32 s{sE}, 0x02020202, s{sE}")
        a(f"    s_cmp_eq_u32 s{sDv}, 0")
        a(f"    s_cselect_b32 s{sTag}, s{sE}, s{sDv}")
        a(f"    v_mov_b32 v{vTag}, s{sTag}")
        for r in range(4):
            a(f"    s_bfe_u32 s{sTB+r}, s{sTag}, {0x80000+8*r}")
        a(f"    s_getreg_b32 s{sPC}, hwreg(HW_REG_XCC_ID, 0, 4)")
        a(f"    s_lshl_b32 s{sPC}, s{sPC}, 24")
        a(f"    v_add_u32 v{vMe}, s{sPC}, v{vTag}")
    def one_lane(instr):
        return ["    s_mov_b64 exec, 1", instr, "    s_mov_b64 exec, -1"]
    def mark_ops():
        return [one_lane(f"    buffer_store_dword v{vMe}, off, s[{WS}:{WS+3}], s{sMk}")]
    def warmup(which):
        for w in which:
            if w in warm: a(f"    s_call_b64 s[{sPC}:{sPC+1}], L_stub_{w}")
    def stub(w):
        if w in warm:
            a(f"L_stub_{w}:")
            a(f"    s_setpc_b64 s[{sPC}:{sPC+1}]")
    def prew_ops():
        return [[f"    v_xor_b32 v{HV}, 0x80, v{vE}", f"    buffer_store_dwordx4 v[{HV}:{HV+3}], v{vPs}, s[{WS}:{WS+3}], s{sP} offen sc1"],
                [f"    buffer_store_dwordx4 v[{HV}:{HV+3}], v{vPs}, s[{WS}:{WS+3}], s{sP} offen offset:2048 sc1"]]
    def hloads():
        a(f"    buffer_load_dword v{vMk}, v{vMk}, s[{WS}:{WS+3}], 0 offen sc1")
        hloads2()
    def hload(cc):
        a(f"    buffer_load_dwordx4 v[{FR+4*cc}:{FR+4*cc+3}], v{vH16}, s[{WS}:{WS+3}], s{sHd0 if cc<4 else sHd1} offen offset:{(cc%4)*1024} sc1")
        a(f"    buffer_load_dword v{CK+cc}, v{vH4}, s[{WS}:{WS+3}], s{sHc} offen offset:{cc*256} sc1")
    def hloads2():
        for cc in range(7):
            a(f"    buffer_load_dwordx4 v[{FR+4*cc}:{FR+4*cc+3}], v{vH16}, s[{WS}:{WS+3}], s{sHd0 if cc<4 else sHd1} offen offset:{(cc%4)*1024} sc1")
            a(f"    buffer_load_dword v{CK+cc}, v{vH4}, s[{WS}:{WS+3}], s{sHc} offen offset:{cc*256} sc1")

    a("L_up:")
    a(f"    v_and_b32 v{vT3}, 2, v{vT1}")
    a(f"    v_xor_b32 v{vT3}, v{vT3}, v{vT2}")
    a(f"    v_mul_u32_u24 v{vWg}, 7168, v{vT1}")
    a(f"    v_lshl_add_u32 v{vWg}, v{vT3}, 4, v{vWg}")
    a(f"    v_xor_b32 v{vWu}, 64, v{vWg}")
    a(f"    v_bfe_u32 v{vT3}, v0, 4, 3")
    a(f"    v_xor_b32 v{vT3}, v{vT3}, v{vT2}")
    a(f"    v_lshlrev_b32 v{vT3}, 4, v{vT3}")
    a(f"    v_lshl_add_u32 v{vX}, v{vT1}, 11, v{vT3}")
    a(f"    s_mul_i32 s{sWoff}, s{sJ}, 7")
    a(f"    s_lshr_b32 s{sT0}, s{sS}, 1")
    a(f"    s_add_u32 s{sWoff}, s{sWoff}, s{sT0}")
    a(f"    s_lshl_b32 s{sWoff}, s{sWoff}, 7")
    a(f"    s_mul_i32 s{sT0}, s{sW}, {8*7168}")
    a(f"    s_add_u32 s{sWoff}, s{sWoff}, s{sT0}")
    a(f"    s_and_b32 s{sSwap}, s{sS}, 1")
    a(f"    s_lshl_b32 s{sXoff}, s{sSwap}, 16")
    a(f"    s_lshl_b32 s{sT0}, s{sW}, 14")
    a(f"    s_add_u32 s{sXoff}, s{sXoff}, s{sT0}")
    a(f"    s_mov_b32 s{sR32}, {32*7168}")
    def chunk_ops(c):
        base=(c%4)*SLOT
        m0first=f"    s_mov_b32 m0, s{sW1K}" if base==0 else f"    s_add_u32 m0, m0, s{s4K}"
        nxt=f"    s_add_u32 m0, m0, s{s4K}"
        if c<2:
            pre=[f"    s_xor_b32 s{sT1}, s{sSwap}, {c}",
                 f"    s_lshl_b32 s{sT0}, s{sT1}, 7",
                 f"    s_add_u32 s{sT0}, s{sT0}, s{sXoff}",
                 f"    s_mul_i32 s{sT1}, s{sT1}, {64*7168}",
                 m0first,
                 f"    s_add_u32 s{sT1}, s{sT1}, s{sWoff}"]
            o1=f"    s_nop 0"
        else:
            pre=[m0first, f"    s_add_u32 s{sT0}, s{sXoff}, {c*128}"]
            o1=f"    s_add_u32 s{sT1}, s{sWoff}, {c*64*7168}"
        return [pre+[f"    buffer_load_dwordx4 v{vX}, s[{X}:{X+3}], s{sT0} offen lds"],
                [nxt,o1,f"    buffer_load_dwordx4 v{vWg}, s[{G}:{G+3}], s{sT1} offen lds"],
                [nxt,f"    s_add_u32 s{sT2}, s{sT1}, s{sR32}",f"    buffer_load_dwordx4 v{vWg}, s[{G}:{G+3}], s{sT2} offen lds"],
                [nxt,"    s_nop 0",f"    buffer_load_dwordx4 v{vWu}, s[{U}:{U+3}], s{sT1} offen lds"],
                [nxt,"    s_nop 0",f"    buffer_load_dwordx4 v{vWu}, s[{U}:{U+3}], s{sT2} offen lds"]]
    ops0=chunk_ops(0)
    for l in ops0[0][:-1]: a(l)
    a("    s_waitcnt lgkmcnt(0)")
    pstamp(2)
    a(ops0[0][-1]); emit(ops0[1:])
    pstamp(3)
    emit(chunk_ops(1))
    a("L_hot_end:")
    a(f"    buffer_load_dword v{vE}, off, s[{WS}:{WS+3}], 0 sc1")
    pstamp(4)
    late_kernargs()
    a(f"    v_bfe_u32 v{vT3}, v{vL}, 4, 1")
    a(f"    v_lshlrev_b32 v{vA}, 13, v{vT3}")
    a(f"    v_mul_u32_u24 v{vHsc}, {14*256}, v{vT3}")
    a(f"    v_lshrrev_b32 v{vT3}, 5, v{vL}")
    a(f"    v_lshl_add_u32 v{vA}, v{vT3}, 10, v{vA}")
    a(f"    v_lshl_add_u32 v{vHsc}, v{vT3}, 6, v{vHsc}")
    a(f"    v_bfe_u32 v{vA2}, v{vL}, 2, 2")
    a(f"    v_lshl_add_u32 v{vA}, v{vA2}, 7, v{vA}")
    a(f"    v_and_b32 v{vA2}, 3, v{vT1}")
    a(f"    v_xor_b32 v{vA2}, v{vA2}, v{vT0}")
    a(f"    v_lshl_add_u32 v{vA}, v{vA2}, 5, v{vA}")
    a(f"    v_and_b32 v{vA2}, 3, v{vL}")
    a(f"    v_lshl_add_u32 v{vA}, v{vA2}, 3, v{vA}")
    a(f"    v_add_u32 v{vA}, s{s4K}, v{vA}")
    a(f"    v_add_u32 v{vA2}, {2*SLOT}, v{vA}")
    a(f"    v_bfe_u32 v{vB}, v{vL}, 1, 3")
    a(f"    v_xor_b32 v{vB}, v{vB}, v{vT3}")
    a(f"    v_lshlrev_b32 v{vB}, 4, v{vB}")
    a(f"    v_and_b32 v{vT3}, 31, v{vL}")
    a(f"    v_lshl_add_u32 v{vB}, v{vT3}, 7, v{vB}")
    for st in range(1,4):
        a(f"    v_xor_b32 v{vB+st}, {st*32}, v{vB}")
    a(f"    v_and_b32 v{vT3}, 15, v{vL}")
    a(f"    v_lshl_add_u32 v{vHsc}, v{vT3}, 2, v{vHsc}")
    a(f"    v_lshlrev_b32 v{vHs}, 2, v{vHsc}")
    def up_setup():
        common_setup()
        a(f"    s_lshl_b32 s{sT0}, s{sJ}, 1")
        a(f"    s_add_u32 s{sT0}, s{sT0}, s{sSwap}")
        a(f"    s_and_b32 s{sT1}, s{sS}, 14")
        a(f"    s_lshl_b32 s{sT1}, s{sT1}, 1")
        a(f"    s_add_u32 s{sT1}, s{sT1}, s{sW}")
        a(f"    s_mul_i32 s{sT2}, s{sT0}, 56")
        a(f"    s_add_u32 s{sT2}, s{sT2}, s{sT1}")
        a(f"    s_lshl_b32 s{sHs}, s{sT2}, 9")
        a(f"    s_add_u32 s{sHs}, s{sHs}, {HD}")
        a(f"    s_lshl_b32 s{sHsc}, s{sT2}, 7")
        a(f"    s_add_u32 s{sHsc}, s{sHsc}, {HC}")
        a(f"    s_mov_b32 s{sMask}, 0xffff0000")
        a(f"    s_mov_b32 s{sNl2e}, 0xbfb8aa3b")
    if setup_first: up_setup()
    warmup(("retry",))
    pstamp(5)
    if c2late and prost and stamps:
        a(f"    s_waitcnt vmcnt(6)")
        pstamp(6)
        emit(chunk_ops(2))
        pstamp(9)
    else:
        emit(chunk_ops(2))
        if not setup_first: up_setup()
        pstamp(6,9)
    def wd_op(i):
        return [f"    s_mov_b32 m0, s{sW1K}" if i==0 else f"    s_add_u32 m0, m0, s{s4K}",
                f"    s_add_u32 s{sT0}, s{sWdA}, {i*32*2048}",
                f"    buffer_load_dwordx4 v{vWd}, s[{WD}:{WD+3}], s{sT0} offen lds"]
    def dsreads(c, fr, lo=0, hi=4):
        base=(c%4)*SLOT
        va,ab=(vA,base) if c%4<2 else (vA2,base-2*SLOT)
        for st in range(lo,hi):
            fb=fr+8*st
            a(f"    ds_read_b64_tr_b16 v[{fb}:{fb+1}], v{va} offset:{ab+st*2048}")
            a(f"    ds_read_b64_tr_b16 v[{fb+2}:{fb+3}], v{va} offset:{ab+st*2048+512}")
            a(f"    ds_read_b128 v[{fb+4}:{fb+7}], v{vB+st} offset:{base}")
    def mfma(c, fr, st):
        fb=fr+8*st
        src = "0" if (c==0 and st==0) else f"v[{ACC}:{ACC+15}]"
        a(f"    v_mfma_f32_32x32x16_bf16 v[{ACC}:{ACC+15}], v[{fb}:{fb+3}], v[{fb+4}:{fb+7}], {src}")
    issued=[5+ncp,6,5]
    wdi=0
    a(f"    s_waitcnt vmcnt({sum(issued[1:])})")
    a("    s_barrier")
    stamp(1)
    dsreads(0,FR)
    emit(chunk_ops(3)); issued.append(5)
    for c in range(15):
        cur,nxt=(FR,FR2) if c%2==0 else (FR2,FR)
        a(f"    s_waitcnt vmcnt({sum(issued[c+2:])}) lgkmcnt(0)")
        a("    s_barrier")
        if strm and stamps and c in (0,2,4,6,8,10,12,14): rawstamp({0:1,2:2,4:3,6:4,8:5,10:6,12:7,14:9}[c])
        if c+4<16: ops=chunk_ops(c+4)
        else:
            n=wdn[c-12]; ops=[wd_op(i) for i in range(wdi,wdi+n)]; wdi+=n
        if c==0: ops.append([f"    buffer_load_dword v{vTag}, off, s[{DBG}:{DBG+3}], 0 sc1"])
        if c==5: ops+=mark_ops()
        if prew is not None and c==prew: ops+=prew_ops()
        issued.append(len(ops))
        k=0; d=0
        sc=(0,0,0,0) if c>=13 else sched
        for st in range(4):
            dsreads(c+1,nxt,d,d+dsched[st]); d+=dsched[st]
            mfma(c,cur,st)
            for _ in range(sc[st]):
                if k<len(ops): emit([ops[k]]); k+=1
        emit(ops[k:])
        if c==4: tag_from()
    for st in range(4):
        a(f"    s_waitcnt lgkmcnt({9-3*st})")
        mfma(15,FR2,st)
    stamp(2)
    if wdepi:
        emit([wd_op(i) for i in range(wdi,14)]); nw=14-wdi; wdi=14
        if 3*nw<12: a(f"    s_nop {11-3*nw}")
    else:
        a("    s_nop 11")
    T=FR
    for i in range(4): a(f"    v_cvt_pk_bf16_f32 v{T+i}, v{ACC+2*i}, v{ACC+2*i+1}")
    for i in range(4):
        a(f"    v_lshlrev_b32 v{ACC+2*i}, 16, v{T+i}")
        a(f"    v_and_b32 v{ACC+2*i+1}, s{sMask}, v{T+i}")
    if trim:
        for i in range(4): a(f"    v_pk_mul_f32 v[{T+8+2*i}:{T+9+2*i}], v[{ACC+2*i}:{ACC+2*i+1}], s[{sMask}:{sNl2e}] op_sel:[0,1] op_sel_hi:[1,1]")
    else:
        for i in range(8): a(f"    v_mul_f32 v{T+8+i}, s{sNl2e}, v{ACC+i}")
    for i in range(8):
        a(f"    v_exp_f32 v{T+8+i}, v{T+8+i}")
        if i<4: a(f"    v_cvt_pk_bf16_f32 v{T+4+i}, v{ACC+8+2*i}, v{ACC+8+2*i+1}")
    a("    s_nop 0")
    for i in range(4): a(f"    v_pk_add_f32 v[{T+8+2*i}:{T+9+2*i}], v[{T+8+2*i}:{T+9+2*i}], 1.0 op_sel_hi:[1,0]")
    for i in range(8):
        a(f"    v_rcp_f32 v{T+8+i}, v{T+8+i}")
        if i%2==0: a(f"    v_lshlrev_b32 v{ACC+8+i}, 16, v{T+4+i//2}")
        else: a(f"    v_and_b32 v{ACC+8+i}, s{sMask}, v{T+4+i//2}")
    for i in range(4): a(f"    v_pk_mul_f32 v[{ACC+2*i}:{ACC+2*i+1}], v[{ACC+2*i}:{ACC+2*i+1}], v[{T+8+2*i}:{T+9+2*i}]")
    for i in range(4): a(f"    v_cvt_pk_bf16_f32 v{T+i}, v{ACC+2*i}, v{ACC+2*i+1}")
    for i in range(4):
        a(f"    v_lshlrev_b32 v{ACC+2*i}, 16, v{T+i}")
        a(f"    v_and_b32 v{ACC+2*i+1}, s{sMask}, v{T+i}")
    for i in range(4): a(f"    v_pk_mul_f32 v[{ACC+2*i}:{ACC+2*i+1}], v[{ACC+2*i}:{ACC+2*i+1}], v[{ACC+8+2*i}:{ACC+9+2*i}]")
    for i in range(4): a(f"    v_cvt_pk_bf16_f32 v{HV+i}, v{ACC+2*i}, v{ACC+2*i+1}")
    a(f"    buffer_store_dwordx4 v[{HV}:{HV+3}], v{vHs}, s[{WS}:{WS+3}], s{sHs} offen")
    a(f"    v_lshl_add_u32 v{vHk}, v{HV+3}, 1, v{HV+2}")
    a(f"    v_lshl_add_u32 v{vHk}, v{vHk}, 1, v{HV+1}")
    a(f"    v_lshl_add_u32 v{vHk}, v{vHk}, 1, v{HV}")
    a(f"    v_xor_b32 v{vHk}, s{sTag}, v{vHk}")
    a(f"    buffer_store_dword v{vHk}, v{vHsc}, s[{WS}:{WS+3}], s{sHsc} offen")
    stamp(3)
    emit([wd_op(i) for i in range(wdi,14)])
    a("L_p2:")
    a("    s_waitcnt vmcnt(0)")
    a("L_p2_own:")
    if stamps:
        a(f"    s_cmp_lt_u32 s{sS}, 14")
        a("    s_cbranch_scc1 L_nost")
        stamp(2,3)
        a("L_nost:")
    a("    s_barrier")
    stamp(4)
    def wdreads(cc):
        for ct in range(4):
            for jj in range(2):
                r=WF+(cc*4+ct)*4+2*jj
                a(f"    ds_read_b64_tr_b16 v[{r}:{r+1}], v{vD+ct} offset:{cc*4096+jj*1024}")
    def wdread(cc,ct,jj):
        r=WF+(cc*4+ct)*4+2*jj
        a(f"    ds_read_b64_tr_b16 v[{r}:{r+1}], v{vD+ct} offset:{cc*4096+jj*1024}")
    def hround(first):
        if first:
            for cc in range(pre if inter else 1): wdreads(cc)
        for cc in range(7):
            if first and not inter:
                if cc<6: wdreads(cc+1)
                a(f"    s_waitcnt vmcnt({12-2*cc}) lgkmcnt({8 if cc<6 else 0})")
            elif first:
                a(f"    s_waitcnt vmcnt({12-2*cc}) lgkmcnt({min(15,8*min(pre-1,6-cc))})")
            else:
                a(f"    s_waitcnt vmcnt({12-2*cc})")
            h=FR+4*cc
            for n,ct in enumerate((2,3,0,1) if (earlyw and cc==6) else (0,1,2,3)):
                r=WF+(cc*4+ct)*4
                src="0" if cc==0 else f"v[{ACC+4*ct}:{ACC+4*ct+3}]"
                a(f"    v_mfma_f32_16x16x32_bf16 v[{ACC+4*ct}:{ACC+4*ct+3}], v[{h}:{h+3}], v[{r}:{r+3}], {src}")
                if first and inter and cc+pre<7:
                    wdread(cc+pre,ct,0); wdread(cc+pre,ct,1)
                if n==0: a(f"    v_lshl_add_u32 v{vT0}, v{h+3}, 1, v{h+2}")
                if n==1: a(f"    v_lshl_add_u32 v{vT0}, v{vT0}, 1, v{h+1}")
                if n==2: a(f"    v_lshl_add_u32 v{vT0}, v{vT0}, 1, v{h}")
            if cc==0:
                a(f"    v_bitop3_b32 v{vAcc}, v{vT0}, v{CK+cc}, v{vTag} bitop3:0x96")
            else:
                a(f"    v_bitop3_b32 v{vT0}, v{vT0}, v{CK+cc}, v{vTag} bitop3:0x96")
                a(f"    v_or_b32 v{vAcc}, v{vAcc}, v{vT0}")
            if cc==3 and not fuse:
                a(f"    v_cmp_ne_u32 vcc, v{vMk}, v{vMe}")
                a("    s_cbranch_vccnz L_pub")
                a("L_pub_done:")
        a(f"    v_cmp_ne_u32 vcc, 0, v{vAcc}")
    def hd(cc): a(f"    buffer_load_dwordx4 v[{FR+4*cc}:{FR+4*cc+3}], v{vH16}, s[{WS}:{WS+3}], s{sHd0 if cc<4 else sHd1} offen offset:{(cc%4)*1024} sc1")
    def hc(cc): a(f"    buffer_load_dword v{CK+cc}, v{vH4}, s[{WS}:{WS+3}], s{sHc} offen offset:{cc*256} sc1")
    if fuse:
        for cc in range(fuse):
            hd(cc); hc(cc)
            if cc==0: a(f"    buffer_load_dword v{vMk}, v{vMk}, s[{WS}:{WS+3}], 0 offen sc1")
            if cc<2: wdreads(cc)
        for cc in range(7):
            a(f"    s_waitcnt vmcnt({2*(min(6,cc+fuse-1)-cc)}) lgkmcnt({8 if cc<6 else 0})")
            h=FR+4*cc
            for n,ct in enumerate((2,3,0,1) if (earlyw and cc==6) else (0,1,2,3)):
                r=WF+(cc*4+ct)*4
                src="0" if cc==0 else f"v[{ACC+4*ct}:{ACC+4*ct+3}]"
                a(f"    v_mfma_f32_16x16x32_bf16 v[{ACC+4*ct}:{ACC+4*ct+3}], v[{h}:{h+3}], v[{r}:{r+3}], {src}")
                if cc+fuse<7:
                    if n==0: hd(cc+fuse)
                    if n==1: hc(cc+fuse)
                if cc+2<7:
                    wdread(cc+2,ct,0); wdread(cc+2,ct,1)
                if n==0: a(f"    v_lshl_add_u32 v{vT0}, v{h+3}, 1, v{h+2}")
                if n==1: a(f"    v_lshl_add_u32 v{vT0}, v{vT0}, 1, v{h+1}")
                if n==2: a(f"    v_lshl_add_u32 v{vT0}, v{vT0}, 1, v{h}")
            if cc==0:
                a(f"    v_bitop3_b32 v{vAcc}, v{vT0}, v{CK+cc}, v{vTag} bitop3:0x96")
            else:
                a(f"    v_bitop3_b32 v{vT0}, v{vT0}, v{CK+cc}, v{vTag} bitop3:0x96")
                a(f"    v_or_b32 v{vAcc}, v{vAcc}, v{vT0}")
            if cc==5:
                a(f"    v_cmp_ne_u32 vcc, v{vMk}, v{vMe}")
                a("    s_cbranch_vccnz L_pub")
                a("L_pub_done:")
        a(f"    v_cmp_ne_u32 vcc, 0, v{vAcc}")
        a("    s_cbranch_vccnz L_h_retry")
    else:
        if dbg=='nochk':
            for cc in range(dlead): wdreads(cc)
            for cc in range(7):
                hd(cc); a(f"    buffer_load_dword v{CK+cc}, off, s[{WS}:{WS+3}], s{sHc} sc1")
                if cc==0: a(f"    buffer_load_dword v{vMk}, v{vMk}, s[{WS}:{WS+3}], 0 offen sc1")
                if cc+dlead<7: wdreads(cc+dlead)
        elif dbg=='noh':
            for cc in range(dlead): wdreads(cc)
            for cc in range(7):
                for _ in range(2): a(f"    buffer_load_dword v{CK+cc}, off, s[{WS}:{WS+3}], s{sHc} sc1")
                if cc==0: a(f"    buffer_load_dword v{vMk}, v{vMk}, s[{WS}:{WS+3}], 0 offen sc1")
                if cc+dlead<7: wdreads(cc+dlead)
        elif dbg=='nods':
            for cc in range(7):
                hload(cc)
                if cc==0: a(f"    buffer_load_dword v{vMk}, v{vMk}, s[{WS}:{WS+3}], 0 offen sc1")
        else:
          for cc in range(dlead): wdreads(cc)
          for cc in range(7):
            hload(cc)
            if cc==0: a(f"    buffer_load_dword v{vMk}, v{vMk}, s[{WS}:{WS+3}], 0 offen sc1")
            if cc+dlead<7: wdreads(cc+dlead)
        a("    s_waitcnt lgkmcnt(0)")
        a("L_h_go:")
        hround(False)
        if not dbg: a("    s_cbranch_vccnz L_h_retry")
    a("L_h_ok:")
    stamp(5)
    if stamps: a(f"    s_sub_u32 s{sWoff}, {SPIN+1}, s{sSpin}")
    if not earlyw: a("    s_nop 3")
    a(f"    ds_write_b128 v{vRw}, v[{ACC+8}:{ACC+11}]")
    a(f"    ds_write_b128 v{vRw}, v[{ACC+12}:{ACC+15}] offset:1024")
    a(f"    s_mov_b32 s{sSpin}, {SPIN}")
    a("    s_waitcnt lgkmcnt(0)")
    a("    s_barrier")
    a(f"    ds_read_b128 v[{FR}:{FR+3}], v{vRr}")
    a(f"    ds_read_b128 v[{FR+4}:{FR+7}], v{vRr} offset:1024")
    for q in range(2):
        a(f"    s_waitcnt lgkmcnt({1-q})")
        for i in range(2):
            r=4*q+2*i
            a(f"    v_pk_add_f32 v[{ACC+r}:{ACC+r+1}], v[{ACC+r}:{ACC+r+1}], v[{FR+r}:{FR+r+1}]")
        for r in range(4):
            a(f"    v_perm_b32 v{FR+8+4*q+r}, v{ACC+4*q+r}, v{vTag}, s{sSel+r}")
        a(f"    buffer_store_dwordx4 v[{FR+8+4*q}:{FR+11+4*q}], v{vPs}, s[{WS}:{WS+3}], s{sP} offen offset:{q*2048} {stfl}")
    stamp(6)
    R0=WF
    if rwait: a("    s_waitcnt vmcnt(0)")
    stamp(9)
    def rround():
        for i in range(2):
            a(f"    buffer_load_dwordx4 v[{R0+4*i}:{R0+4*i+3}], v{vL16}, s[{WS}:{WS+3}], s{sRed} offen offset:{i*1024} {rdfl}")
        for i in range(2):
            a(f"    s_waitcnt vmcnt({1-i})")
            for r in range(4):
                a(f"    v_xor_b32 v{R0+4*i+r}, s{sTB+r}, v{R0+4*i+r}")
            if i==0:
                a(f"    v_or3_b32 v{vAcc}, v{R0}, v{R0+1}, v{R0+2}")
            else:
                a(f"    v_or3_b32 v{vAcc}, v{vAcc}, v{R0+3}, v{R0+4}")
                a(f"    v_or3_b32 v{vT0}, v{R0+5}, v{R0+6}, v{R0+7}")
        a(f"    v_pk_add_f32 v[{ACC}:{ACC+1}], v[{R0}:{R0+1}], v[{R0+4}:{R0+5}]")
        a(f"    v_pk_add_f32 v[{ACC+2}:{ACC+3}], v[{R0+2}:{R0+3}], v[{R0+6}:{R0+7}]")
        a(f"    v_or_b32 v{vAcc}, v{vAcc}, v{vT0}")
        a(f"    v_and_b32 v{vAcc}, 0xff, v{vAcc}")
        a(f"    v_cmp_ne_u32 vcc, 0, v{vAcc}")
    a("L_r:")
    rround()
    a("    s_cbranch_vccnz L_r_retry")
    stamp(7)
    a(f"    v_permlane32_swap_b32 v{ACC}, v{ACC+2}")
    a(f"    v_permlane32_swap_b32 v{ACC+1}, v{ACC+3}")
    a("    s_nop 0")
    a(f"    v_pk_add_f32 v[{ACC}:{ACC+1}], v[{ACC}:{ACC+1}], v[{ACC+2}:{ACC+3}]")
    a("    s_nop 1")
    a(f"    v_permlane16_swap_b32 v{ACC}, v{ACC+1}")
    a("    s_nop 1")
    a(f"    v_add_f32 v{ACC}, v{ACC}, v{ACC+1}")
    a(f"    v_cvt_pk_bf16_f32 v{ACC}, v{ACC}, v{ACC}")
    a(f"    buffer_store_short v{ACC}, v{vOut}, s[{OUT}:{OUT+3}], s{sOut} offen {outflags}")
    if stamps:
        a("    s_waitcnt vmcnt(0)")
        stamp(8)
        a(f"    s_memrealtime s[{sPC}:{sPC+1}]")
        a(f"    s_getreg_b32 s{sT1}, hwreg(HW_REG_XCC_ID)")
        a(f"    v_mov_b32 v{FR}, s{sST+2*NST}")
        for i in range(1,NST):
            a(f"    s_sub_u32 s{sT0}, s{sST+2*i}, s{sST}")
            a(f"    v_mov_b32 v{FR+i}, s{sT0}")
        a(f"    v_mov_b32 v{FR+NST}, s{sT1}")
        a("    s_waitcnt lgkmcnt(0)")
        a(f"    v_mov_b32 v{FR+NST+1}, s{sPC}")
        a(f"    s_sub_u32 s{sSpin}, {SPIN+1}, s{sSpin}")
        a(f"    s_lshl_b32 s{sSpin}, s{sSpin}, 16")
        a(f"    s_add_u32 s{sSpin}, s{sSpin}, s{sWoff}")
        a(f"    v_mov_b32 v{FR+NST+2}, s{sSpin}")
        a(f"    s_lshl_b32 s{sT0}, s2, 2")
        a(f"    s_add_u32 s{sT0}, s{sT0}, s{sW}")
        a(f"    s_lshl_b32 s{sT0}, s{sT0}, 6")
        a(f"    s_add_u32 s{sT0}, s{sT0}, {STAMP_OFF}")
        a("    s_mov_b64 exec, 1")
        for q in range(4):
            a(f"    buffer_store_dwordx4 v[{FR+4*q}:{FR+4*q+3}], off, s[{WS}:{WS+3}], s{sT0} offset:{16*q}")
    a("L_end:")
    a("    s_endpgm")
    stub("retry")
    a("L_r_retry:")
    if rsleep: a(f"    s_sleep {rsleep}")
    a(f"    s_sub_u32 s{sSpin}, s{sSpin}, 1")
    a("    s_cbranch_scc0 L_r")
    a("    s_endpgm")
    a("L_pub:")
    a(f"    s_add_u32 s{sHs}, s{sHs}, {HB}")
    a(f"    s_add_u32 s{sHsc}, s{sHsc}, {HB}")
    a(f"    buffer_store_dwordx4 v[{HV}:{HV+3}], v{vHs}, s[{WS}:{WS+3}], s{sHs} offen sc1")
    a(f"    buffer_store_dword v{vHk}, v{vHsc}, s[{WS}:{WS+3}], s{sHsc} offen sc1")
    a(f"    v_mov_b32 v{vMk}, v{vMe}")
    a("    s_waitcnt vmcnt(0)")
    a("    s_branch L_pub_done")
    a("L_h_retry:")
    a(f"    s_sub_u32 s{sSpin}, s{sSpin}, 1")
    a("    s_cbranch_scc1 L_end")
    a(f"    s_cmp_gt_u32 s{sSpin}, {SPIN-N0}")
    a("    s_cbranch_scc1 L_h")
    a(f"    v_xor_b32 v{vH16}, {HB}, v{vH16}")
    a(f"    v_xor_b32 v{vH4}, {HB}, v{vH4}")
    a("L_h:")
    hloads2()
    if fuse:
        hround(False)
        a("    s_cbranch_vccnz L_h_retry")
        a("    s_branch L_h_ok")
    else:
        a("    s_branch L_h_go")
    a("L_pf_other:")
    a("    s_waitcnt vmcnt(0)")
    a("L_pf_rest:")
    late_kernargs()
    common_setup()
    a(f"    s_add_u32 s{sWdB}, s{sWdA}, {7*32*2048}")
    a(f"    s_add_u32 s{sMB}, s{sW1K}, {7*4096}")
    a(f"    s_cmp_lt_u32 s{sS}, 16")
    a(f"    s_cselect_b32 s{sT0}, s{sWdB}, s{sWdA}")
    a(f"    s_cselect_b32 s{sWdB}, s{sWdA}, s{sWdB}")
    a(f"    s_mov_b32 s{sWdA}, s{sT0}")
    a(f"    s_cselect_b32 s{sMA}, s{sMB}, s{sW1K}")
    a(f"    s_cselect_b32 s{sMB}, s{sW1K}, s{sMB}")
    a(f"    v_mov_b32 v{vHs}, 0x7ffffff0")
    a(f"    v_mov_b32 v{vHsc}, v{vHs}")
    a(f"    s_mov_b32 s{sHs}, 0")
    a(f"    s_mov_b32 s{sHsc}, 0")
    for r in range(4): a(f"    v_mov_b32 v{HV+r}, 0")
    a(f"    v_mov_b32 v{vHk}, 0")
    a(f"    s_waitcnt vmcnt({npf}) lgkmcnt(0)")
    a(f"    buffer_load_dword v{vTag}, off, s[{DBG}:{DBG+3}], 0 sc1")
    if prew is not None: emit(prew_ops())
    a(f"    s_cmp_lg_u32 s{sW}, 1")
    a("    s_cbranch_scc1 L_pf_notouch")
    a(f"    s_mul_i32 s{sT0}, s{sJ}, {14*4096}")
    a(f"    s_lshl_b32 s{sT1}, s{sSwap}, 13")
    a(f"    s_add_u32 s{sT0}, s{sT0}, s{sT1}")
    a(f"    s_add_u32 s{sT0}, s{sT0}, {HD}")
    a(f"    s_mul_i32 s{sT2}, s{sJ}, {14*1024}")
    a(f"    s_add_u32 s{sT2}, s{sT2}, s{sT1}")
    a(f"    s_add_u32 s{sT2}, s{sT2}, {HC-7*8192}")
    a(f"    s_cmp_ge_u32 s{sSwap}, 7")
    a(f"    s_cselect_b32 s{sT0}, s{sT2}, s{sT0}")
    a(f"    s_cmp_ge_u32 s{sSwap}, 9")
    a("    s_cbranch_scc1 L_pf_notouch")
    a(f"    v_lshlrev_b32 v{vT3}, 7, v{vL}")
    a(f"    buffer_load_dword v{vDum}, v{vT3}, s[{WS}:{WS+3}], s{sT0} offen")
    a("L_pf_notouch:")
    if c3help:
        a(f"    s_cmp_lg_u32 s{sW}, 0")
        a("    s_cbranch_scc1 L_pf_noc3")
        a(f"    s_mul_i32 s{sT0}, s{sSwap}, 25")
        a(f"    s_mul_i32 s{sT1}, s{sJ}, 448")
        a(f"    s_add_u32 s{sT1}, s{sT1}, s{sT0}")
        a(f"    s_lshl_b32 s{sT1}, s{sT1}, 11")
        a(f"    v_min_u32 v{vT3}, 49, v{vL}")
        a(f"    v_lshlrev_b32 v{vT3}, 10, v{vT3}")
        a(f"    buffer_load_dword v{vDum}, v{vT3}, s[{WD}:{WD+3}], s{sT1} offen offset:384")
        a("L_pf_noc3:")
    pstamp(4,5,6,9)
    a(f"    s_lshl_b32 s{sT2}, s2, 2")
    a(f"    s_add_u32 s{sT2}, s{sT2}, s{sW}")
    a(f"    buffer_load_dword v{vDum}, v{vMk}, s[{WS}:{WS+3}], 0 offen")
    a("    s_barrier")
    stamp(1)
    for i in range(14):
        sm,sw=(sMA,sWdA) if i<7 else (sMB,sWdB)
        a(f"    s_mov_b32 m0, s{sm}" if i%7==0 else f"    s_add_u32 m0, m0, s{s4K}")
        a(f"    s_add_u32 s{sT0}, s{sw}, {(i%7)*32*2048}")
        a(f"    buffer_load_dwordx4 v{vWd}, s[{WD}:{WD+3}], s{sT0} offen {wdflags} lds")
    if strm and stamps:
        ex=14+3
        for r,slot in ((1,1),(2,2),(4,3),(6,4),(7,5)):
            a(f"    s_waitcnt vmcnt({min(63,ex+2*(R-r))})"); rawstamp(slot)
        for n,slot in ((9,6),(4,7),(0,9)):
            a(f"    s_waitcnt vmcnt({n})"); rawstamp(slot)
    warmup(("retry",))
    a("    s_waitcnt vmcnt(14)")
    tag_from()
    emit(mark_ops())
    a(f"    s_cmp_lg_u32 s{sT2}, {112*4+1}")
    a("    s_cbranch_scc1 L_p2")
    emit([one_lane(f"    buffer_store_dword v{vTag}, off, s[{DBG}:{DBG+3}], 0 sc1")])
    a("    s_waitcnt vmcnt(0)")
    emit([one_lane(f"    buffer_store_dword v{vTag}, off, s[{WS}:{WS+3}], 0")])
    a("L_last:")
    a("    s_branch L_p2_own")
    a('.section .rodata,"a"')
    a(".p2align 6")
    kernel_desc(a,NAME,NV,100 if stamps else 80,NV)
    open(path,"w").write(a.text())

if __name__=="__main__":
    V={"p9":{}, "d_all":dict(dbg="all"), "d_nochk":dict(dbg="nochk"), "d_noh":dict(dbg="noh"), "d_nods":dict(dbg="nods")}
    names=[]
    for k,o in V.items():
        gen(k+".s",**o); gen(k+"_st.s",stamps=True,**o); names+= [k+"_st.s"]
    print(" ".join(names))
```

```python
import sys
from asmlib import *
NAME="standalone__swiglu_ffn__sampling_kernel"
M,D,F=64,1024,3584
MK=0x1000; HD=0x10000; HC=0x80000; PB=0x100000; HB=0x400000; WSN=0x500000
SPIN=1<<18; N0=24
SLOT=20480; RS=57344
SPLIT=7; XLEAD=3; FUSE=4; WDN=(5,2)

DOC = """;
;
;
;
"""

def gen(path):
    a=Asm()
    a(HEADER.rstrip())
    a("; @launch grid=(256,1,1) block=(256,1,1) lds=81920")
    a(DOC.rstrip())
    a('.amdgcn_target "amdgcn-amd-amdhsa--gfx950"')
    a(".text")
    kernel_begin(a,NAME)
    c=lambda t: a("    ; "+t)
    X,G,U,WD,OUT,DBG,WS=4,8,12,16,20,24,28
    sJ,sS,sW,sW1K=32,33,34,35
    sT0,sT1,sT2=36,37,38
    sWoff,sXoff,sSwap=39,40,41
    sWdA,sWdB,sMA,sMB=42,43,44,45
    sTag=46
    sTB=48; sSel=52
    sHd0,sHd1,sHc=56,57,58
    sP,sRed,sOut=59,60,61
    sMask,sNl2e=62,63
    sHs,sHsc,s4K,sR32=64,65,66,67
    sPC=68
    sMk,sSpin=70,73
    sE,sDv=74,75
    vL=1; vT0,vT1,vT2,vT3=2,3,4,5
    vWg,vWu,vX,vA,vA2=6,7,8,9,10
    vB=11; vWd=15; vD=16
    vTag=20; vL16=21; vDum=22; vRw=23
    vHs=24; vHsc=25; vPs=26; vOut=27; vAcc=28; vH16=29; vH4=30; vRr=31
    ACC=32; FR=48; CK=76; WF=84; FR2=84
    HV=196; vHk=200; vMk=201; vMe=202; vE=203
    NV=208
    def emit(ops):
        for op in ops:
            for l in op: a(l)
    def one_lane(instr):
        return ["    s_mov_b64 exec, 1", instr, "    s_mov_b64 exec, -1"]
    c("entry: everything up to L_hot_end is kept inside the first 768 bytes (what the fetcher has ready at start)")
    a(f"    s_lshr_b32 s{sS}, s2, 3")
    a(f"    s_cmp_ge_u32 s{sS}, 32")
    a("    s_cbranch_scc1 L_end")
    for i,b in ((0,X),(1,G),(2,U),(6,WS)):
        a(f"    s_load_dwordx2 s[{b}:{b+1}], s[0:1], {8*i}")
    c("pull this kernel's own code into L2")
    a(f"    s_getpc_b64 s[{sPC}:{sPC+1}]")
    a("L_pc:")
    a(f"    v_lshlrev_b32 v{vT3}, 7, v0")
    a(f"    v_min_u32 v{vT3}, L_last-L_pc, v{vT3}")
    a(f"    global_load_dword v{vDum}, v{vT3}, s[{sPC}:{sPC+1}]")
    a(f"    v_lshrrev_b32 v{vT0}, 6, v0                 ; wave")
    a(f"    v_and_b32 v{vL}, 63, v0                    ; lane")
    a(f"    s_and_b32 s{sJ}, s2, 7")
    a(f"    v_readfirstlane_b32 s{sW}, v{vT0}")
    a(f"    s_mov_b32 s{X+3}, 0x20000")
    a(f"    s_mov_b32 s{X+2}, s{X+3}")
    a(f"    s_mov_b32 s{G+2}, {D*F*2}")
    a(f"    s_mov_b32 s{G+3}, s{X+3}")
    a(f"    s_mov_b32 s{U+2}, s{G+2}")
    a(f"    s_mov_b32 s{U+3}, s{X+3}")
    a(f"    s_mov_b32 s{WS+2}, {WSN}")
    a(f"    s_mov_b32 s{WS+3}, s{X+3}")
    a(f"    v_lshrrev_b32 v{vT1}, 3, v{vL}")
    a(f"    v_and_b32 v{vT2}, 7, v{vL}")
    a(f"    s_lshl_b32 s{sW1K}, s{sW}, 10")
    a(f"    s_movk_i32 s{s4K}, 4096")
    a(f"    s_cmp_lt_u32 s{sS}, 14")
    a("    s_cbranch_scc1 L_up")
    c("prefetch role: p = 0..17, the workgroups with the fewest w_down misses (30,31,14,15,19,27) come first")
    a(f"    s_sub_u32 s{sSwap}, s{sS}, 12")
    a(f"    s_cmp_ge_u32 s{sSwap}, 18")
    a(f"    s_cselect_b32 s{sT0}, 18, 0")
    a(f"    s_sub_u32 s{sSwap}, s{sSwap}, s{sT0}")
    a(f"    s_movk_i32 s{sT1}, 0x90")
    a(f"    s_bitcmp1_b32 s{sT1}, s{sSwap}")
    a(f"    s_cselect_b32 s{sT0}, 3, 0")
    a(f"    s_mov_b32 s{sT1}, 0x8020")
    a(f"    s_bitcmp1_b32 s{sT1}, s{sSwap}")
    a(f"    s_cselect_b32 s{sT0}, 10, s{sT0}")
    a(f"    s_xor_b32 s{sSwap}, s{sSwap}, s{sT0}")
    a(f"    s_cmp_eq_u32 s{sW}, 0")
    a("    s_cbranch_scc1 L_pf_w0")
    a("    s_waitcnt lgkmcnt(0)")
    a(f"    buffer_load_dword v{vE}, off, s[{WS}:{WS+3}], 0 sc1")
    a("    s_branch L_pf_other")
    a("L_pf_w0:")
    rr=9*SPLIT; R=-(-1024//rr)
    c(f"wave 0: even p w_gate, odd p w_up; a request covers {SPLIT} rows x 7 lines, all p together {rr} rows (rows past 1023 are out of range)")
    a(f"    v_min_u32 v{vT3}, {7*SPLIT-1}, v{vL}")
    a(f"    v_mul_u32_u24 v{vWg}, 37, v{vT3}")
    a(f"    v_lshrrev_b32 v{vWg}, 8, v{vWg}              ; lane/7")
    a(f"    v_mul_u32_u24 v{vWg}, {7168-7*128}, v{vWg}")
    a(f"    v_lshl_add_u32 v{vWg}, v{vT3}, 7, v{vWg}")
    a(f"    v_lshlrev_b32 v{vX}, 11, v{vL}")
    a(f"    s_mul_i32 s{sWoff}, s{sJ}, 896")
    a(f"    s_lshr_b32 s{sT0}, s{sSwap}, 1")
    a(f"    s_mul_i32 s{sT0}, s{sT0}, {SPLIT*7168}")
    a(f"    s_add_u32 s{sWoff}, s{sWoff}, s{sT0}")
    a(f"    s_lshl_b32 s{sXoff}, s{sSwap}, 7")
    a(f"    s_cmp_ge_u32 s{sSwap}, 16")
    a(f"    s_cselect_b32 s{sXoff}, s{X+2}, s{sXoff}")
    a(f"    s_mov_b32 s{sT1}, {R}")
    c(f"chunk p of x is requested {XLEAD} rounds before its rows of w")
    a(f"    s_mul_i32 s{sT2}, s{sSwap}, {int(64*64/rr)}")
    a(f"    s_lshr_b32 s{sT2}, s{sT2}, 6")
    a(f"    s_sub_i32 s{sT2}, s{sT2}, {XLEAD}")
    a(f"    s_max_i32 s{sT2}, s{sT2}, 0")
    a(f"    s_min_i32 s{sT2}, s{sT2}, {R-1}")
    a(f"    s_sub_u32 s{sT2}, {R}, s{sT2}")
    a(f"    s_bitcmp1_b32 s{sSwap}, 0")
    a("    s_waitcnt lgkmcnt(0)")
    a(f"    s_cselect_b64 s[{G}:{G+1}], s[{U}:{U+1}], s[{G}:{G+1}]")
    a(f"    buffer_load_dword v{vE}, off, s[{WS}:{WS+3}], 0 sc1")
    a("L_pf_loop:")
    a(f"    s_cmp_lg_u32 s{sT1}, s{sT2}")
    a("    s_cbranch_scc1 L_pf_nox")
    a(f"    buffer_load_dword v{vDum}, v{vX}, s[{X}:{X+3}], s{sXoff} offen")
    a("L_pf_nox:")
    a(f"    buffer_load_dword v{vDum}, v{vWg}, s[{G}:{G+3}], s{sWoff} offen")
    a(f"    s_add_u32 s{sWoff}, s{sWoff}, {rr*7168}")
    a(f"    s_sub_u32 s{sT1}, s{sT1}, 1")
    a(f"    s_cmp_lg_u32 s{sT1}, 0")
    a("    s_cbranch_scc1 L_pf_loop")
    npf=R+1
    a("    s_branch L_pf_rest")

    def late_kernargs():
        for i,b in ((3,WD),(4,OUT),(5,DBG)):
            a(f"    s_load_dwordx2 s[{b}:{b+1}], s[0:1], {8*i}")
        a(f"    s_mov_b32 s{WD+2}, s{G+2}")
        a(f"    s_mov_b32 s{WD+3}, s{X+3}")
        a(f"    s_mov_b32 s{OUT+2}, s{X+3}")
        a(f"    s_mov_b32 s{OUT+3}, s{X+3}")
        a(f"    s_movk_i32 s{DBG+2}, 256")
        a(f"    s_mov_b32 s{DBG+3}, s{X+3}")
    def common_setup():
        c("phase 2/3 addresses.  nb = s&15 (output columns), mh2 = s>>4 (token half), tt = wave&1, kh = wave>>1")
        c("w_down DMA: voffset = r8*2048 + (pos ^ (r8&6))*16, soffset = (448j + 8*wave + 32i)*2048 + nb*128")
        a(f"    v_and_b32 v{vT3}, 6, v{vT1}")
        a(f"    v_xor_b32 v{vT3}, v{vT3}, v{vT2}")
        a(f"    v_lshlrev_b32 v{vT3}, 4, v{vT3}")
        a(f"    v_lshl_add_u32 v{vWd}, v{vT1}, 11, v{vT3}")
        a(f"    s_mul_i32 s{sWdA}, s{sJ}, {448*2048}")
        a(f"    s_and_b32 s{sT0}, s{sS}, 15")
        a(f"    s_lshl_b32 s{sT0}, s{sT0}, 7")
        a(f"    s_add_u32 s{sWdA}, s{sWdA}, s{sT0}")
        a(f"    s_lshl_b32 s{sT1}, s{sW}, 14")
        a(f"    s_add_u32 s{sWdA}, s{sWdA}, s{sT1}")
        c("out soffset = (32*mh2 + 4j)*2048 + nb*128 + wave*32")
        a(f"    s_lshr_b32 s{sT2}, s{sS}, 4")
        a(f"    s_lshl_b32 s{sOut}, s{sT2}, 16")
        a(f"    s_add_u32 s{sOut}, s{sOut}, s{sT0}")
        a(f"    s_lshl_b32 s{sT0}, s{sJ}, 13")
        a(f"    s_add_u32 s{sOut}, s{sOut}, s{sT0}")
        a(f"    s_lshl_b32 s{sT0}, s{sW}, 5")
        a(f"    s_add_u32 s{sOut}, s{sOut}, s{sT0}")
        c("h soffsets: ((4j + 2*mh2 + tt)*14 + 7*kh + cc) KiB (checks: quarter of that)")
        a(f"    s_lshr_b32 s{sT0}, s{sW}, 1")
        a(f"    s_lshl_b32 s{sT1}, s{sJ}, 1")
        a(f"    s_add_u32 s{sT1}, s{sT1}, s{sT2}")
        a(f"    s_lshl_b32 s{sT1}, s{sT1}, 1")
        a(f"    s_and_b32 s{sT2}, s{sW}, 1")
        a(f"    s_add_u32 s{sT1}, s{sT1}, s{sT2}")
        a(f"    s_lshl_b32 s{sT1}, s{sT1}, 1")
        a(f"    s_add_u32 s{sT1}, s{sT1}, s{sT0}")
        a(f"    s_mul_i32 s{sT1}, s{sT1}, 7")
        a(f"    s_lshl_b32 s{sHc}, s{sT1}, 8")
        a(f"    s_add_u32 s{sHc}, s{sHc}, {HC}")
        a(f"    s_lshl_b32 s{sHd0}, s{sT1}, 10")
        a(f"    s_add_u32 s{sHd0}, s{sHd0}, {HD}")
        a(f"    s_add_u32 s{sHd1}, s{sHd0}, s{s4K}")
        c("partials [s][reducer 8][column tile 4][source 8][16 columns x 16 B]: store s*64K + tt*32K + kh*4K + j*256, load s*64K + j*8K + wave*2K")
        a(f"    s_lshl_b32 s{sRed}, s{sS}, 16")
        a(f"    s_add_u32 s{sRed}, s{sRed}, {PB}")
        a(f"    s_lshl_b32 s{sT2}, s{sT2}, 15")
        a(f"    s_add_u32 s{sP}, s{sRed}, s{sT2}")
        a(f"    s_lshl_b32 s{sT2}, s{sT0}, 12")
        a(f"    s_add_u32 s{sP}, s{sP}, s{sT2}")
        a(f"    s_lshl_b32 s{sT2}, s{sJ}, 8")
        a(f"    s_add_u32 s{sP}, s{sP}, s{sT2}")
        a(f"    s_lshl_b32 s{sT2}, s{sJ}, 13")
        a(f"    s_add_u32 s{sRed}, s{sRed}, s{sT2}")
        a(f"    s_lshl_b32 s{sT2}, s{sW}, 11")
        a(f"    s_add_u32 s{sRed}, s{sRed}, s{sT2}")
        a(f"    s_mov_b32 s{sSel}, 0x07060500")
        for r in range(1,4):
            a(f"    s_add_u32 s{sSel+r}, s{sSel}, {r}")
        a(f"    v_lshlrev_b32 v{vL16}, 4, v{vL}")
        a(f"    v_lshlrev_b32 v{vH4}, 2, v{vL}")
        a(f"    v_mov_b32 v{vH16}, v{vL16}")
        c("K-half exchange in LDS: write RS + wave*2K, read RS + (wave^2)*2K")
        a(f"    s_add_u32 s{sT2}, s{sT2}, {RS}")
        a(f"    v_add_u32 v{vRw}, s{sT2}, v{vL16}")
        a(f"    v_xor_b32 v{vRr}, s{s4K}, v{vRw}")
        c("w_down transposing reads: kh*28672 + (16*(kg>>1) + 4*(kg&1) + (q>>2))*128 + ((a ^ 2kh ^ f)*32) + (q&3)*8, f = (lane>>3)&3")
        a(f"    v_lshrrev_b32 v{vT0}, 5, v{vL}")
        a(f"    v_lshlrev_b32 v{vT0}, 11, v{vT0}")
        a(f"    v_bfe_u32 v{vT3}, v{vL}, 2, 3")
        a(f"    v_lshl_add_u32 v{vT0}, v{vT3}, 7, v{vT0}")
        a(f"    v_and_b32 v{vT3}, 3, v{vL}")
        a(f"    v_lshl_add_u32 v{vT0}, v{vT3}, 3, v{vT0}")
        a(f"    s_and_b32 s{sT1}, s{sW}, 2")
        a(f"    v_and_b32 v{vT3}, 3, v{vT1}")
        a(f"    v_xor_b32 v{vT3}, s{sT1}, v{vT3}")
        a(f"    v_lshl_add_u32 v{vT0}, v{vT3}, 5, v{vT0}")
        a(f"    s_mul_i32 s{sT0}, s{sT0}, 28672")
        a(f"    v_add_u32 v{vD}, s{sT0}, v{vT0}")
        for ct in range(1,4):
            a(f"    v_xor_b32 v{vD+ct}, {ct*32}, v{vD}")
        c("partial store voffset = (lane>>4)*8K + (lane&15)*16, out voffset = (lane>>4)*2K + (lane&15)*2")
        a(f"    v_lshrrev_b32 v{vT0}, 4, v{vL}")
        a(f"    v_and_b32 v{vT3}, 15, v{vL}")
        a(f"    v_lshlrev_b32 v{vPs}, 13, v{vT0}")
        a(f"    v_lshl_add_u32 v{vPs}, v{vT3}, 4, v{vPs}")
        a(f"    v_lshlrev_b32 v{vOut}, 11, v{vT0}")
        a(f"    v_lshl_add_u32 v{vOut}, v{vT3}, 1, v{vOut}")
        a(f"    s_mov_b32 s{sSpin}, {SPIN}")
        c("placement marks: MK + j*128 + s*4")
        a(f"    s_lshl_b32 s{sMk}, s{sJ}, 7")
        a(f"    s_add_u32 s{sMk}, s{sMk}, {MK}")
        a(f"    v_and_b32 v{vMk}, 31, v{vL}")
        a(f"    v_lshl_add_u32 v{vMk}, v{vMk}, 2, s{sMk}")
        a(f"    s_lshl_b32 s{sT0}, s{sS}, 2")
        a(f"    s_add_u32 s{sMk}, s{sMk}, s{sT0}")
    def tag_from(lbl):
        c("tag = d_debug[0] ? d_debug[0] : next(epoch)")
        a(f"    v_readfirstlane_b32 s{sE}, v{vE}")
        a(f"    v_readfirstlane_b32 s{sDv}, v{vTag}")
        a("    s_nop 0")
        a(f"    s_add_u32 s{sE}, s{sE}, 0x01010101")
        a(f"    s_cmp_eq_u32 s{sE}, 0")
        a(f"    s_cselect_b32 s{sE}, 0x02020202, s{sE}")
        a(f"    s_cmp_eq_u32 s{sDv}, 0")
        a(f"    s_cselect_b32 s{sTag}, s{sE}, s{sDv}")
        a(f"    v_mov_b32 v{vTag}, s{sTag}")
        for r in range(4):
            a(f"    s_bfe_u32 s{sTB+r}, s{sTag}, {0x80000+8*r}")
        c("d_debug[0] already set: the epoch word read above may be the next launch's, so withdraw the mark made from it")
        a(f"    s_cmp_eq_u32 s{sDv}, 0")
        a(f"    s_cbranch_scc1 L_mk_{lbl}")
        emit([one_lane(f"    buffer_store_dword v{vTag}, off, s[{WS}:{WS+3}], s{sMk}")])
        a(f"L_mk_{lbl}:")
    def mark_op():
        return [f"    s_getreg_b32 s{sPC}, hwreg(HW_REG_XCC_ID, 0, 4)   ; mark = epoch + 0x5a + (die << 24)",
                f"    s_lshl_b32 s{sPC}, s{sPC}, 24",
                f"    s_add_u32 s{sPC}, s{sPC}, 0x5a",
                f"    v_add_u32 v{vMe}, s{sPC}, v{vE}"]+one_lane(f"    buffer_store_dword v{vMe}, off, s[{WS}:{WS+3}], s{sMk}")
    def hd(cc): a(f"    buffer_load_dwordx4 v[{FR+4*cc}:{FR+4*cc+3}], v{vH16}, s[{WS}:{WS+3}], s{sHd0 if cc<4 else sHd1} offen offset:{(cc%4)*1024} sc1")
    def hc(cc): a(f"    buffer_load_dword v{CK+cc}, v{vH4}, s[{WS}:{WS+3}], s{sHc} offen offset:{cc*256} sc1")
    def warm(): a(f"    s_call_b64 s[{sPC}:{sPC+1}], L_stub")

    a("L_up:")
    c("up role: fb = 7j + (s>>1) (64 hidden columns), mh = s&1 (token half)")
    c("gate/up DMA voffset = r8*7168 + (pos ^ (r8&2) [^4 for up])*16; x DMA voffset = r8*2048 + (pos ^ ((tid>>4)&7))*16")
    a(f"    v_and_b32 v{vT3}, 2, v{vT1}")
    a(f"    v_xor_b32 v{vT3}, v{vT3}, v{vT2}")
    a(f"    v_mul_u32_u24 v{vWg}, 7168, v{vT1}")
    a(f"    v_lshl_add_u32 v{vWg}, v{vT3}, 4, v{vWg}")
    a(f"    v_xor_b32 v{vWu}, 64, v{vWg}")
    a(f"    v_bfe_u32 v{vT3}, v0, 4, 3")
    a(f"    v_xor_b32 v{vT3}, v{vT3}, v{vT2}")
    a(f"    v_lshlrev_b32 v{vT3}, 4, v{vT3}")
    a(f"    v_lshl_add_u32 v{vX}, v{vT1}, 11, v{vT3}")
    a(f"    s_mul_i32 s{sWoff}, s{sJ}, 7")
    a(f"    s_lshr_b32 s{sT0}, s{sS}, 1")
    a(f"    s_add_u32 s{sWoff}, s{sWoff}, s{sT0}")
    a(f"    s_lshl_b32 s{sWoff}, s{sWoff}, 7")
    a(f"    s_mul_i32 s{sT0}, s{sW}, {8*7168}")
    a(f"    s_add_u32 s{sWoff}, s{sWoff}, s{sT0}")
    a(f"    s_and_b32 s{sSwap}, s{sS}, 1")
    a(f"    s_lshl_b32 s{sXoff}, s{sSwap}, 16")
    a(f"    s_lshl_b32 s{sT0}, s{sW}, 14")
    a(f"    s_add_u32 s{sXoff}, s{sXoff}, s{sT0}")
    a(f"    s_mov_b32 s{sR32}, {32*7168}")
    c("LDS slot (20 KiB): x 4K | gate rows 0-31 | gate rows 32-63 | up rows 0-31 | up rows 32-63; mh = 1 takes chunks 0,1 in the other order")
    def chunk_ops(ch):
        base=(ch%4)*SLOT
        m0first=f"    s_mov_b32 m0, s{sW1K}" if base==0 else f"    s_add_u32 m0, m0, s{s4K}"
        nxt=f"    s_add_u32 m0, m0, s{s4K}"
        if ch<2:
            pre=[f"    s_xor_b32 s{sT1}, s{sSwap}, {ch}",
                 f"    s_lshl_b32 s{sT0}, s{sT1}, 7",
                 f"    s_add_u32 s{sT0}, s{sT0}, s{sXoff}",
                 f"    s_mul_i32 s{sT1}, s{sT1}, {64*7168}",
                 m0first,
                 f"    s_add_u32 s{sT1}, s{sT1}, s{sWoff}"]
            o1=f"    s_nop 0"
        else:
            pre=[m0first, f"    s_add_u32 s{sT0}, s{sXoff}, {ch*128}"]
            o1=f"    s_add_u32 s{sT1}, s{sWoff}, {ch*64*7168}"
        return [pre+[f"    buffer_load_dwordx4 v{vX}, s[{X}:{X+3}], s{sT0} offen lds"],
                [nxt,o1,f"    buffer_load_dwordx4 v{vWg}, s[{G}:{G+3}], s{sT1} offen lds"],
                [nxt,f"    s_add_u32 s{sT2}, s{sT1}, s{sR32}",f"    buffer_load_dwordx4 v{vWg}, s[{G}:{G+3}], s{sT2} offen lds"],
                [nxt,"    s_nop 0",f"    buffer_load_dwordx4 v{vWu}, s[{U}:{U+3}], s{sT1} offen lds"],
                [nxt,"    s_nop 0",f"    buffer_load_dwordx4 v{vWu}, s[{U}:{U+3}], s{sT2} offen lds"]]
    ops0=chunk_ops(0)
    for l in ops0[0][:-1]: a(l)
    a("    s_waitcnt lgkmcnt(0)")
    a(ops0[0][-1]); emit(ops0[1:])
    emit(chunk_ops(1))
    a("L_hot_end:")
    a(f"    buffer_load_dword v{vE}, off, s[{WS}:{WS+3}], 0 sc1")
    late_kernargs()
    c("A operand (16 gate + 16 up columns): 4096 + mat*8192 + (8kg + (q>>2))*128 + ((wave ^ f)*32) + (q&3)*8")
    a(f"    v_bfe_u32 v{vT3}, v{vL}, 4, 1")
    a(f"    v_lshlrev_b32 v{vA}, 13, v{vT3}")
    a(f"    v_mul_u32_u24 v{vHsc}, {14*256}, v{vT3}")
    a(f"    v_lshrrev_b32 v{vT3}, 5, v{vL}")
    a(f"    v_lshl_add_u32 v{vA}, v{vT3}, 10, v{vA}")
    a(f"    v_lshl_add_u32 v{vHsc}, v{vT3}, 6, v{vHsc}")
    a(f"    v_bfe_u32 v{vA2}, v{vL}, 2, 2")
    a(f"    v_lshl_add_u32 v{vA}, v{vA2}, 7, v{vA}")
    a(f"    v_and_b32 v{vA2}, 3, v{vT1}")
    a(f"    v_xor_b32 v{vA2}, v{vA2}, v{vT0}")
    a(f"    v_lshl_add_u32 v{vA}, v{vA2}, 5, v{vA}")
    a(f"    v_and_b32 v{vA2}, 3, v{vL}")
    a(f"    v_lshl_add_u32 v{vA}, v{vA2}, 3, v{vA}")
    a(f"    v_add_u32 v{vA}, s{s4K}, v{vA}")
    a(f"    v_add_u32 v{vA2}, {2*SLOT}, v{vA}")
    c("B operand (32 tokens): token*128 + (((2*step + kg) ^ ((token>>1)&7))*16)")
    a(f"    v_bfe_u32 v{vB}, v{vL}, 1, 3")
    a(f"    v_xor_b32 v{vB}, v{vB}, v{vT3}")
    a(f"    v_lshlrev_b32 v{vB}, 4, v{vB}")
    a(f"    v_and_b32 v{vT3}, 31, v{vL}")
    a(f"    v_lshl_add_u32 v{vB}, v{vT3}, 7, v{vB}")
    for st in range(1,4):
        a(f"    v_xor_b32 v{vB+st}, {st*32}, v{vB}")
    a(f"    v_and_b32 v{vT3}, 15, v{vL}")
    a(f"    v_lshl_add_u32 v{vHsc}, v{vT3}, 2, v{vHsc}")
    a(f"    v_lshlrev_b32 v{vHs}, 2, v{vHsc}")
    common_setup()
    c("h store soffset: ((2j + mh)*56 + 4*(s>>1) + wave) * 512 B (checks: 128 B)")
    a(f"    s_lshl_b32 s{sT0}, s{sJ}, 1")
    a(f"    s_add_u32 s{sT0}, s{sT0}, s{sSwap}")
    a(f"    s_and_b32 s{sT1}, s{sS}, 14")
    a(f"    s_lshl_b32 s{sT1}, s{sT1}, 1")
    a(f"    s_add_u32 s{sT1}, s{sT1}, s{sW}")
    a(f"    s_mul_i32 s{sT2}, s{sT0}, 56")
    a(f"    s_add_u32 s{sT2}, s{sT2}, s{sT1}")
    a(f"    s_lshl_b32 s{sHs}, s{sT2}, 9")
    a(f"    s_add_u32 s{sHs}, s{sHs}, {HD}")
    a(f"    s_lshl_b32 s{sHsc}, s{sT2}, 7")
    a(f"    s_add_u32 s{sHsc}, s{sHsc}, {HC}")
    a(f"    s_mov_b32 s{sMask}, 0xffff0000")
    a(f"    s_mov_b32 s{sNl2e}, 0xbfb8aa3b              ; -log2(e)")
    warm()
    emit(chunk_ops(2))
    def wd_op(i):
        return [f"    s_mov_b32 m0, s{sW1K}" if i==0 else f"    s_add_u32 m0, m0, s{s4K}",
                f"    s_add_u32 s{sT0}, s{sWdA}, {i*32*2048}",
                f"    buffer_load_dwordx4 v{vWd}, s[{WD}:{WD+3}], s{sT0} offen lds"]
    def dsreads(ch, fr, lo=0, hi=4):
        base=(ch%4)*SLOT
        va,ab=(vA,base) if ch%4<2 else (vA2,base-2*SLOT)
        for st in range(lo,hi):
            fb=fr+8*st
            a(f"    ds_read_b64_tr_b16 v[{fb}:{fb+1}], v{va} offset:{ab+st*2048}")
            a(f"    ds_read_b64_tr_b16 v[{fb+2}:{fb+3}], v{va} offset:{ab+st*2048+512}")
            a(f"    ds_read_b128 v[{fb+4}:{fb+7}], v{vB+st} offset:{base}")
    def mfma(ch, fr, st):
        fb=fr+8*st
        src = "0" if (ch==0 and st==0) else f"v[{ACC}:{ACC+15}]"
        a(f"    v_mfma_f32_32x32x16_bf16 v[{ACC}:{ACC+15}], v[{fb}:{fb+3}], v[{fb+4}:{fb+7}], {src}")
    issued=[6,6,5]
    wdi=0
    c("iteration c: chunk c is multiplied, chunk c+1 is read from LDS, chunk c+4 is requested into the slot chunk c left")
    a(f"    s_waitcnt vmcnt({sum(issued[1:])})")
    a("    s_barrier")
    dsreads(0,FR)
    emit(chunk_ops(3)); issued.append(5)
    sched=(2,1,1,1); dsched=(2,2,0,0)
    for ch in range(15):
        cur,nxt=(FR,FR2) if ch%2==0 else (FR2,FR)
        c(f"--- c = {ch}")
        if ch==14:
            a("    s_waitcnt lgkmcnt(0)")
            for st in range(4): mfma(ch,cur,st)
            a(f"    s_waitcnt vmcnt({sum(issued[ch+2:])})")
            a("    s_barrier")
            dsreads(15,nxt)
            continue
        a(f"    s_waitcnt vmcnt({sum(issued[ch+2:])}) lgkmcnt(0)")
        a("    s_barrier")
        if ch+4<16: ops=chunk_ops(ch+4)
        else:
            n=WDN[ch-12]; ops=[wd_op(i) for i in range(wdi,wdi+n)]; wdi+=n
        if ch==0: ops.append([f"    buffer_load_dword v{vTag}, off, s[{DBG}:{DBG+3}], 0 sc1"])
        if ch==1: ops.append(mark_op())
        issued.append(len(ops))
        k=0; d=0
        sc=(0,0,0,0) if ch>=13 else sched
        for st in range(4):
            dsreads(ch+1,nxt,d,d+dsched[st]); d+=dsched[st]
            mfma(ch,cur,st)
            for _ in range(sc[st]):
                if k<len(ops): emit([ops[k]]); k+=1
        emit(ops[k:])
        if ch==4: tag_from('up')
    c("--- c = 15")
    for st in range(4):
        a(f"    s_waitcnt lgkmcnt({9-3*st})")
        mfma(15,FR2,st)
    a("    s_nop 11")
    c("h = bf16(bf16(silu(bf16(g))) * bf16(u)); g in v32..39, u in v40..47")
    T=FR
    for i in range(4): a(f"    v_cvt_pk_bf16_f32 v{T+i}, v{ACC+2*i}, v{ACC+2*i+1}")
    for i in range(4):
        a(f"    v_lshlrev_b32 v{ACC+2*i}, 16, v{T+i}")
        a(f"    v_and_b32 v{ACC+2*i+1}, s{sMask}, v{T+i}")
    for i in range(4): a(f"    v_pk_mul_f32 v[{T+8+2*i}:{T+9+2*i}], v[{ACC+2*i}:{ACC+2*i+1}], s[{sMask}:{sNl2e}] op_sel:[0,1] op_sel_hi:[1,1]")
    for i in range(8):
        a(f"    v_exp_f32 v{T+8+i}, v{T+8+i}")
        if i<4: a(f"    v_cvt_pk_bf16_f32 v{T+4+i}, v{ACC+8+2*i}, v{ACC+8+2*i+1}")
    a("    s_nop 0")
    for i in range(4): a(f"    v_pk_add_f32 v[{T+8+2*i}:{T+9+2*i}], v[{T+8+2*i}:{T+9+2*i}], 1.0 op_sel_hi:[1,0]")
    for i in range(8):
        a(f"    v_rcp_f32 v{T+8+i}, v{T+8+i}")
        if i%2==0: a(f"    v_lshlrev_b32 v{ACC+8+i}, 16, v{T+4+i//2}")
        else: a(f"    v_and_b32 v{ACC+8+i}, s{sMask}, v{T+4+i//2}")
    for i in range(4): a(f"    v_pk_mul_f32 v[{ACC+2*i}:{ACC+2*i+1}], v[{ACC+2*i}:{ACC+2*i+1}], v[{T+8+2*i}:{T+9+2*i}]")
    for i in range(4): a(f"    v_cvt_pk_bf16_f32 v{T+i}, v{ACC+2*i}, v{ACC+2*i+1}")
    for i in range(4):
        a(f"    v_lshlrev_b32 v{ACC+2*i}, 16, v{T+i}")
        a(f"    v_and_b32 v{ACC+2*i+1}, s{sMask}, v{T+i}")
    for i in range(4): a(f"    v_pk_mul_f32 v[{ACC+2*i}:{ACC+2*i+1}], v[{ACC+2*i}:{ACC+2*i+1}], v[{ACC+8+2*i}:{ACC+9+2*i}]")
    for i in range(4): a(f"    v_cvt_pk_bf16_f32 v{HV+i}, v{ACC+2*i}, v{ACC+2*i+1}")
    a(f"    buffer_store_dwordx4 v[{HV}:{HV+3}], v{vHs}, s[{WS}:{WS+3}], s{sHs} offen")
    a(f"    v_add3_u32 v{vHk}, v{HV}, v{HV+1}, v{HV+2}")
    a(f"    v_lshl_add_u32 v{vHk}, v{HV+3}, 1, v{vHk}")
    a(f"    v_xor_b32 v{vHk}, s{sTag}, v{vHk}")
    a(f"    buffer_store_dword v{vHk}, v{vHsc}, s[{WS}:{WS+3}], s{sHsc} offen")
    emit([wd_op(i) for i in range(wdi,14)])
    a("L_p2:")
    c("phase 2: the w_down slice is in LDS; h chunks and w_down fragments are fetched ahead of the MFMAs that use them")
    a("    s_waitcnt vmcnt(0)")
    a("L_p2_own:")
    a("    s_barrier")
    def wdread(cc,ct,jj):
        r=WF+(cc*4+ct)*4+2*jj
        a(f"    ds_read_b64_tr_b16 v[{r}:{r+1}], v{vD+ct} offset:{cc*4096+jj*1024}")
    def hash_step(cc,n):
        h=FR+4*cc
        if n==0: a(f"    v_add3_u32 v{vT0}, v{h}, v{h+1}, v{h+2}")
        if n==1: a(f"    v_lshl_add_u32 v{vT0}, v{h+3}, 1, v{vT0}")
        if n==2: a(f"    v_bitop3_b32 v{vAcc if cc==0 else (vT3 if cc%2 else vT0)}, v{vT0}, v{CK+cc}, v{vTag} bitop3:0x96")
        if n==3 and cc>0 and cc%2==0: a(f"    v_or3_b32 v{vAcc}, v{vAcc}, v{vT0}, v{vT3}")
    def hround(first):
        for cc in range(7):
            if first: a(f"    s_waitcnt vmcnt({2*(min(6,cc+FUSE-1)-cc)}) lgkmcnt({8 if cc<6 else 0})")
            else: a(f"    s_waitcnt vmcnt({12-2*cc})")
            h=FR+4*cc
            for n,ct in enumerate((2,3,0,1) if cc==6 else (0,1,2,3)):
                r=WF+(cc*4+ct)*4
                src="0" if cc==0 else f"v[{ACC+4*ct}:{ACC+4*ct+3}]"
                a(f"    v_mfma_f32_16x16x32_bf16 v[{ACC+4*ct}:{ACC+4*ct+3}], v[{h}:{h+3}], v[{r}:{r+3}], {src}")
                if first:
                    if cc+FUSE<7:
                        if n==0: hd(cc+FUSE)
                        if n==1: hc(cc+FUSE)
                    if cc+2<7:
                        wdread(cc+2,ct,0); wdread(cc+2,ct,1)
                hash_step(cc,n)
            if first and cc==5:
                c("a workgroup of this group is on another die (or not heard from): publish h at device scope as well")
                a(f"    v_cmp_ne_u32 vcc, v{vMk}, v{vMe}")
                a("    s_cbranch_vccnz L_pub")
                a("L_pub_done:")
        a("    s_nop 1")
        a(f"    v_cmp_ne_u32 vcc, 0, v{vAcc}")
        a("    s_cbranch_vccnz L_h_retry")
    for cc in range(FUSE):
        hd(cc); hc(cc)
        if cc==0: a(f"    buffer_load_dword v{vMk}, v{vMk}, s[{WS}:{WS+3}], 0 offen sc1")
        if cc<2:
            for ct in range(4):
                for jj in range(2): wdread(cc,ct,jj)
    hround(True)
    a("L_h_ok:")
    c("add the other K half (wave ^ 2), tag and send the partial sums")
    a(f"    ds_write_b128 v{vRw}, v[{ACC+8}:{ACC+11}]")
    a(f"    ds_write_b128 v{vRw}, v[{ACC+12}:{ACC+15}] offset:1024")
    a(f"    s_mov_b32 s{sSpin}, {SPIN}")
    a("    s_waitcnt lgkmcnt(0)")
    a("    s_barrier")
    a(f"    ds_read_b128 v[{FR}:{FR+3}], v{vRr}")
    a(f"    ds_read_b128 v[{FR+4}:{FR+7}], v{vRr} offset:1024")
    for q in range(2):
        a(f"    s_waitcnt lgkmcnt({1-q})")
        for i in range(2):
            r=4*q+2*i
            a(f"    v_pk_add_f32 v[{ACC+r}:{ACC+r+1}], v[{ACC+r}:{ACC+r+1}], v[{FR+r}:{FR+r+1}]")
        for r in range(4):
            a(f"    v_perm_b32 v{FR+8+4*q+r}, v{ACC+4*q+r}, v{vTag}, s{sSel+r}")
        a(f"    buffer_store_dwordx4 v[{FR+8+4*q}:{FR+11+4*q}], v{vPs}, s[{WS}:{WS+3}], s{sP} offen offset:{q*2048} sc1")
    R0=WF
    a("    s_waitcnt vmcnt(0)")
    a("L_r:")
    c("phase 3: 8 sources x 16 columns x 4 tokens per wave")
    for i in range(2):
        a(f"    buffer_load_dwordx4 v[{R0+4*i}:{R0+4*i+3}], v{vL16}, s[{WS}:{WS+3}], s{sRed} offen offset:{i*1024} sc1")
    for i in range(2):
        a(f"    s_waitcnt vmcnt({1-i})")
        for r in range(4):
            a(f"    v_xor_b32 v{R0+4*i+r}, s{sTB+r}, v{R0+4*i+r}")
        if i==0:
            a(f"    v_or3_b32 v{vAcc}, v{R0}, v{R0+1}, v{R0+2}")
        else:
            a(f"    v_or3_b32 v{vAcc}, v{vAcc}, v{R0+3}, v{R0+4}")
            a(f"    v_or3_b32 v{vT0}, v{R0+5}, v{R0+6}, v{R0+7}")
    a(f"    v_pk_add_f32 v[{ACC}:{ACC+1}], v[{R0}:{R0+1}], v[{R0+4}:{R0+5}]")
    a(f"    v_pk_add_f32 v[{ACC+2}:{ACC+3}], v[{R0+2}:{R0+3}], v[{R0+6}:{R0+7}]")
    a(f"    v_or_b32 v{vAcc}, v{vAcc}, v{vT0}")
    a(f"    v_and_b32 v{vAcc}, 0xff, v{vAcc}")
    a(f"    v_cmp_ne_u32 vcc, 0, v{vAcc}")
    a("    s_cbranch_vccnz L_r_retry")
    a(f"    v_permlane32_swap_b32 v{ACC}, v{ACC+2}")
    a(f"    v_permlane32_swap_b32 v{ACC+1}, v{ACC+3}")
    a("    s_nop 0")
    a(f"    v_pk_add_f32 v[{ACC}:{ACC+1}], v[{ACC}:{ACC+1}], v[{ACC+2}:{ACC+3}]")
    a("    s_nop 1")
    a(f"    v_permlane16_swap_b32 v{ACC}, v{ACC+1}")
    a("    s_nop 1")
    a(f"    v_add_f32 v{ACC}, v{ACC}, v{ACC+1}")
    a(f"    v_cvt_pk_bf16_f32 v{ACC}, v{ACC}, v{ACC}")
    a(f"    buffer_store_short v{ACC}, v{vOut}, s[{OUT}:{OUT+3}], s{sOut} offen")
    a("L_end:")
    a("    s_endpgm")
    a("L_stub:")
    a(f"    s_setpc_b64 s[{sPC}:{sPC+1}]")
    a("L_r_retry:")
    a(f"    s_sub_u32 s{sSpin}, s{sSpin}, 1")
    a("    s_cbranch_scc0 L_r")
    a("    s_endpgm")
    a("L_pub:")
    c("(prefetch-role waves have out-of-range offsets here: nothing is stored)")
    a(f"    s_add_u32 s{sHs}, s{sHs}, {HB}")
    a(f"    s_add_u32 s{sHsc}, s{sHsc}, {HB}")
    a(f"    buffer_store_dwordx4 v[{HV}:{HV+3}], v{vHs}, s[{WS}:{WS+3}], s{sHs} offen sc1")
    a(f"    buffer_store_dword v{vHk}, v{vHsc}, s[{WS}:{WS+3}], s{sHsc} offen sc1")
    a(f"    v_mov_b32 v{vMk}, v{vMe}")
    a("    s_waitcnt vmcnt(0)")
    a("    s_branch L_pub_done")
    a("L_h_retry:")
    a(f"    s_sub_u32 s{sSpin}, s{sSpin}, 1")
    a("    s_cbranch_scc1 L_end")
    a(f"    s_cmp_gt_u32 s{sSpin}, {SPIN-N0}")
    a("    s_cbranch_scc1 L_h")
    a(f"    v_xor_b32 v{vH16}, {HB}, v{vH16}")
    a(f"    v_xor_b32 v{vH4}, {HB}, v{vH4}")
    a("L_h:")
    for cc in range(7): hd(cc); hc(cc)
    hround(False)
    a("    s_branch L_h_ok")
    a("L_pf_other:")
    a("    s_waitcnt vmcnt(0)")
    a("L_pf_rest:")
    late_kernargs()
    common_setup()
    c("workgroups 14,15 share their w_down slice with 30,31: start at the other half")
    a(f"    s_add_u32 s{sWdB}, s{sWdA}, {7*32*2048}")
    a(f"    s_add_u32 s{sMB}, s{sW1K}, {7*4096}")
    a(f"    s_cmp_lt_u32 s{sS}, 16")
    a(f"    s_cselect_b32 s{sT0}, s{sWdB}, s{sWdA}")
    a(f"    s_cselect_b32 s{sWdB}, s{sWdA}, s{sWdB}")
    a(f"    s_mov_b32 s{sWdA}, s{sT0}")
    a(f"    s_cselect_b32 s{sMA}, s{sMB}, s{sW1K}")
    a(f"    s_cselect_b32 s{sMB}, s{sW1K}, s{sMB}")
    a(f"    v_mov_b32 v{vHs}, 0x7ffffff0")
    a(f"    v_mov_b32 v{vHsc}, v{vHs}")
    a(f"    s_mov_b32 s{sHs}, 0")
    a(f"    s_mov_b32 s{sHsc}, 0")
    for r in range(4): a(f"    v_mov_b32 v{HV+r}, 0")
    a(f"    v_mov_b32 v{vHk}, 0")
    c("the epoch word has arrived before d_debug[0] is read (waves 1-3 waited at L_pf_other)")
    a(f"    s_waitcnt vmcnt({npf}) lgkmcnt(0)")
    a(f"    buffer_load_dword v{vTag}, off, s[{DBG}:{DBG+3}], 0 sc1")
    c("wave 1 of p<9: bring the group's h lines (448 data + 112 check) into L2 so that the producers' stores hit")
    a(f"    s_cmp_lg_u32 s{sW}, 1")
    a("    s_cbranch_scc1 L_pf_notouch")
    a(f"    s_mul_i32 s{sT0}, s{sJ}, {14*4096}")
    a(f"    s_lshl_b32 s{sT1}, s{sSwap}, 13")
    a(f"    s_add_u32 s{sT0}, s{sT0}, s{sT1}")
    a(f"    s_add_u32 s{sT0}, s{sT0}, {HD}")
    a(f"    s_mul_i32 s{sT2}, s{sJ}, {14*1024}")
    a(f"    s_add_u32 s{sT2}, s{sT2}, s{sT1}")
    a(f"    s_add_u32 s{sT2}, s{sT2}, {HC-7*8192}")
    a(f"    s_cmp_ge_u32 s{sSwap}, 7")
    a(f"    s_cselect_b32 s{sT0}, s{sT2}, s{sT0}")
    a(f"    s_cmp_ge_u32 s{sSwap}, 9")
    a("    s_cbranch_scc1 L_pf_notouch")
    a(f"    v_lshlrev_b32 v{vT3}, 7, v{vL}")
    a(f"    buffer_load_dword v{vDum}, v{vT3}, s[{WS}:{WS+3}], s{sT0} offen")
    a("L_pf_notouch:")
    c("wave 0: lines with address bits [9:7] == 3 get half the L1 miss slots; spread those w_down columns (nb 3, 11) over all p")
    a(f"    s_cmp_lg_u32 s{sW}, 0")
    a("    s_cbranch_scc1 L_pf_noc3")
    a(f"    s_mul_i32 s{sT0}, s{sSwap}, 25")
    a(f"    s_mul_i32 s{sT1}, s{sJ}, 448")
    a(f"    s_add_u32 s{sT1}, s{sT1}, s{sT0}")
    a(f"    s_lshl_b32 s{sT1}, s{sT1}, 11")
    a(f"    v_min_u32 v{vT3}, 49, v{vL}")
    a(f"    v_lshlrev_b32 v{vT3}, 10, v{vT3}")
    a(f"    buffer_load_dword v{vDum}, v{vT3}, s[{WD}:{WD+3}], s{sT1} offen offset:384")
    a("L_pf_noc3:")
    a(f"    s_lshl_b32 s{sT2}, s2, 2")
    a(f"    s_add_u32 s{sT2}, s{sT2}, s{sW}")
    a(f"    buffer_load_dword v{vDum}, v{vMk}, s[{WS}:{WS+3}], 0 offen")
    emit([mark_op()])
    a("    s_barrier")
    for i in range(14):
        sm,sw=(sMA,sWdA) if i<7 else (sMB,sWdB)
        a(f"    s_mov_b32 m0, s{sm}" if i%7==0 else f"    s_add_u32 m0, m0, s{s4K}")
        a(f"    s_add_u32 s{sT0}, s{sw}, {(i%7)*32*2048}")
        a(f"    buffer_load_dwordx4 v{vWd}, s[{WD}:{WD+3}], s{sT0} offen lds")
    warm()
    a("    s_waitcnt vmcnt(14)")
    tag_from('pf')
    c("epoch owner (wave 1 of workgroup 112): publish the tag in d_debug[0], advance the epoch word once that store is done")
    a(f"    s_cmp_lg_u32 s{sT2}, {112*4+1}")
    a("    s_cbranch_scc1 L_p2")
    emit([one_lane(f"    buffer_store_dword v{vTag}, off, s[{DBG}:{DBG+3}], 0 sc1")])
    a("    s_waitcnt vmcnt(0)")
    emit([one_lane(f"    buffer_store_dword v{vTag}, off, s[{WS}:{WS+3}], 0")])
    a("L_last:")
    a("    s_branch L_p2_own")
    a('.section .rodata,"a"')
    a(".p2align 6")
    kernel_desc(a,NAME,NV,80,NV)
    open(path,"w").write(a.text())

if __name__=="__main__":
    gen(sys.argv[1] if len(sys.argv)>1 else "final.s")
```

```python
import sys
from asmlib import *
NAME="standalone__swiglu_ffn__sampling_kernel"
M,D,F=64,1024,3584
MK=0x1000; HD=0x10000; HC=0x80000; PB=0x100000; HB=0x400000; WSN=0x500000
SPIN=1<<18; N0=24
SLOT=20480; RS=57344
SPLIT=7; XLEAD=3; FUSE=4; WDN=(5,2)

DOC = """;
;
;
;
"""

def gen(path):
    a=Asm()
    a(HEADER.rstrip())
    a("; @launch grid=(256,1,1) block=(256,1,1) lds=81920")
    a(DOC.rstrip())
    a('.amdgcn_target "amdgcn-amd-amdhsa--gfx950"')
    a(".text")
    kernel_begin(a,NAME)
    c=lambda t: a("    ; "+t)
    X,G,U,WD,OUT,DBG,WS=4,8,12,16,20,24,28
    sJ,sS,sW,sW1K=32,33,34,35
    sT0,sT1,sT2=36,37,38
    sWoff,sXoff,sSwap=39,40,41
    sWdA,sWdB,sMA,sMB=42,43,44,45
    sTag=46
    sTB=48; sSel=52
    sHd0,sHd1,sHc=56,57,58
    sP,sRed,sOut=59,60,61
    sMask,sNl2e=62,63
    sHs,sHsc,s4K,sR32=64,65,66,67
    sPC=68
    sMk,sSpin=70,73
    sE,sDv=74,75
    vL=1; vT0,vT1,vT2,vT3=2,3,4,5
    vWg,vWu,vX,vA,vA2=6,7,8,9,10
    vB=11; vWd=15; vD=16
    vTag=20; vL16=21; vDum=22; vRw=23
    vHs=24; vHsc=25; vPs=26; vOut=27; vAcc=28; vH16=29; vH4=30; vRr=31
    ACC=32; FR=48; CK=76; WF=84; FR2=84
    HV=196; vHk=200; vMk=201; vMe=202; vE=203
    NV=208
    def emit(ops):
        for op in ops:
            for l in op: a(l)
    def one_lane(instr):
        return ["    s_mov_b64 exec, 1", instr, "    s_mov_b64 exec, -1"]
    c("entry: everything up to L_hot_end is kept inside the first 768 bytes (what the fetcher has ready at start)")
    a(f"    s_lshr_b32 s{sS}, s2, 3")
    a(f"    s_cmp_ge_u32 s{sS}, 32")
    a("    s_cbranch_scc1 L_end")
    for i,b in ((0,X),(1,G),(2,U),(6,WS)):
        a(f"    s_load_dwordx2 s[{b}:{b+1}], s[0:1], {8*i}")
    c("pull this kernel's own code into L2")
    a(f"    s_getpc_b64 s[{sPC}:{sPC+1}]")
    a("L_pc:")
    a(f"    v_lshlrev_b32 v{vT3}, 7, v0")
    a(f"    v_min_u32 v{vT3}, L_last-L_pc, v{vT3}")
    a(f"    global_load_dword v{vDum}, v{vT3}, s[{sPC}:{sPC+1}]")
    a(f"    v_lshrrev_b32 v{vT0}, 6, v0                 ; wave")
    a(f"    v_and_b32 v{vL}, 63, v0                    ; lane")
    a(f"    s_and_b32 s{sJ}, s2, 7")
    a(f"    v_readfirstlane_b32 s{sW}, v{vT0}")
    a(f"    s_mov_b32 s{X+3}, 0x20000")
    a(f"    s_mov_b32 s{X+2}, s{X+3}")
    a(f"    s_mov_b32 s{G+2}, {D*F*2}")
    a(f"    s_mov_b32 s{G+3}, s{X+3}")
    a(f"    s_mov_b32 s{U+2}, s{G+2}")
    a(f"    s_mov_b32 s{U+3}, s{X+3}")
    a(f"    s_mov_b32 s{WS+2}, {WSN}")
    a(f"    s_mov_b32 s{WS+3}, s{X+3}")
    a(f"    v_lshrrev_b32 v{vT1}, 3, v{vL}")
    a(f"    v_and_b32 v{vT2}, 7, v{vL}")
    a(f"    s_lshl_b32 s{sW1K}, s{sW}, 10")
    a(f"    s_movk_i32 s{s4K}, 4096")
    a(f"    s_cmp_lt_u32 s{sS}, 14")
    a("    s_cbranch_scc1 L_up")
    c("prefetch role: p = 0..17, the workgroups with the fewest w_down misses (30,31,14,15,19,27) come first")
    a(f"    s_sub_u32 s{sSwap}, s{sS}, 12")
    a(f"    s_cmp_ge_u32 s{sSwap}, 18")
    a(f"    s_cselect_b32 s{sT0}, 18, 0")
    a(f"    s_sub_u32 s{sSwap}, s{sSwap}, s{sT0}")
    a(f"    s_movk_i32 s{sT1}, 0x90")
    a(f"    s_bitcmp1_b32 s{sT1}, s{sSwap}")
    a(f"    s_cselect_b32 s{sT0}, 3, 0")
    a(f"    s_mov_b32 s{sT1}, 0x8020")
    a(f"    s_bitcmp1_b32 s{sT1}, s{sSwap}")
    a(f"    s_cselect_b32 s{sT0}, 10, s{sT0}")
    a(f"    s_xor_b32 s{sSwap}, s{sSwap}, s{sT0}")
    a(f"    s_cmp_eq_u32 s{sW}, 0")
    a("    s_cbranch_scc1 L_pf_w0")
    a("    s_waitcnt lgkmcnt(0)")
    a(f"    buffer_load_dword v{vE}, off, s[{WS}:{WS+3}], 0 sc1")
    a("    s_branch L_pf_other")
    a("L_pf_w0:")
    rr=9*SPLIT; R=-(-1024//rr)
    c(f"wave 0: even p w_gate, odd p w_up; a request covers {SPLIT} rows x 7 lines, all p together {rr} rows (rows past 1023 are out of range)")
    a(f"    v_min_u32 v{vT3}, {7*SPLIT-1}, v{vL}")
    a(f"    v_mul_u32_u24 v{vWg}, 37, v{vT3}")
    a(f"    v_lshrrev_b32 v{vWg}, 8, v{vWg}              ; lane/7")
    a(f"    v_mul_u32_u24 v{vWg}, {7168-7*128}, v{vWg}")
    a(f"    v_lshl_add_u32 v{vWg}, v{vT3}, 7, v{vWg}")
    a(f"    v_lshlrev_b32 v{vX}, 11, v{vL}")
    a(f"    s_mul_i32 s{sWoff}, s{sJ}, 896")
    a(f"    s_lshr_b32 s{sT0}, s{sSwap}, 1")
    a(f"    s_mul_i32 s{sT0}, s{sT0}, {SPLIT*7168}")
    a(f"    s_add_u32 s{sWoff}, s{sWoff}, s{sT0}")
    a(f"    s_lshl_b32 s{sXoff}, s{sSwap}, 7")
    a(f"    s_cmp_ge_u32 s{sSwap}, 16")
    a(f"    s_cselect_b32 s{sXoff}, s{X+2}, s{sXoff}")
    a(f"    s_mov_b32 s{sT1}, {R}")
    c(f"chunk p of x is requested {XLEAD} rounds before its rows of w")
    a(f"    s_mul_i32 s{sT2}, s{sSwap}, {int(64*64/rr)}")
    a(f"    s_lshr_b32 s{sT2}, s{sT2}, 6")
    a(f"    s_sub_i32 s{sT2}, s{sT2}, {XLEAD}")
    a(f"    s_max_i32 s{sT2}, s{sT2}, 0")
    a(f"    s_min_i32 s{sT2}, s{sT2}, {R-1}")
    a(f"    s_sub_u32 s{sT2}, {R}, s{sT2}")
    a(f"    s_bitcmp1_b32 s{sSwap}, 0")
    a("    s_waitcnt lgkmcnt(0)")
    a(f"    s_cselect_b64 s[{G}:{G+1}], s[{U}:{U+1}], s[{G}:{G+1}]")
    a(f"    buffer_load_dword v{vE}, off, s[{WS}:{WS+3}], 0 sc1")
    a("L_pf_loop:")
    a(f"    s_cmp_lg_u32 s{sT1}, s{sT2}")
    a("    s_cbranch_scc1 L_pf_nox")
    a(f"    buffer_load_dword v{vDum}, v{vX}, s[{X}:{X+3}], s{sXoff} offen")
    a("L_pf_nox:")
    a(f"    buffer_load_dword v{vDum}, v{vWg}, s[{G}:{G+3}], s{sWoff} offen")
    a(f"    s_add_u32 s{sWoff}, s{sWoff}, {rr*7168}")
    a(f"    s_sub_u32 s{sT1}, s{sT1}, 1")
    a(f"    s_cmp_lg_u32 s{sT1}, 0")
    a("    s_cbranch_scc1 L_pf_loop")
    npf=R+1
    a("    s_branch L_pf_rest")

    def late_kernargs():
        for i,b in ((3,WD),(4,OUT),(5,DBG)):
            a(f"    s_load_dwordx2 s[{b}:{b+1}], s[0:1], {8*i}")
        a(f"    s_mov_b32 s{WD+2}, s{G+2}")
        a(f"    s_mov_b32 s{WD+3}, s{X+3}")
        a(f"    s_mov_b32 s{OUT+2}, s{X+3}")
        a(f"    s_mov_b32 s{OUT+3}, s{X+3}")
        a(f"    s_movk_i32 s{DBG+2}, 256")
        a(f"    s_mov_b32 s{DBG+3}, s{X+3}")
    def common_setup():
        c("phase 2/3 addresses.  nb = s&15 (output columns), mh2 = s>>4 (token half), tt = wave&1, kh = wave>>1")
        c("w_down DMA: voffset = r8*2048 + (pos ^ (r8&6))*16, soffset = (448j + 8*wave + 32i)*2048 + nb*128")
        a(f"    v_and_b32 v{vT3}, 6, v{vT1}")
        a(f"    v_xor_b32 v{vT3}, v{vT3}, v{vT2}")
        a(f"    v_lshlrev_b32 v{vT3}, 4, v{vT3}")
        a(f"    v_lshl_add_u32 v{vWd}, v{vT1}, 11, v{vT3}")
        a(f"    s_mul_i32 s{sWdA}, s{sJ}, {448*2048}")
        a(f"    s_and_b32 s{sT0}, s{sS}, 15")
        a(f"    s_lshl_b32 s{sT0}, s{sT0}, 7")
        a(f"    s_add_u32 s{sWdA}, s{sWdA}, s{sT0}")
        a(f"    s_lshl_b32 s{sT1}, s{sW}, 14")
        a(f"    s_add_u32 s{sWdA}, s{sWdA}, s{sT1}")
        c("out soffset = (32*mh2 + 4j)*2048 + nb*128 + wave*32")
        a(f"    s_lshr_b32 s{sT2}, s{sS}, 4")
        a(f"    s_lshl_b32 s{sOut}, s{sT2}, 16")
        a(f"    s_add_u32 s{sOut}, s{sOut}, s{sT0}")
        a(f"    s_lshl_b32 s{sT0}, s{sJ}, 13")
        a(f"    s_add_u32 s{sOut}, s{sOut}, s{sT0}")
        a(f"    s_lshl_b32 s{sT0}, s{sW}, 5")
        a(f"    s_add_u32 s{sOut}, s{sOut}, s{sT0}")
        c("h soffsets: ((4j + 2*mh2 + tt)*14 + 7*kh + cc) KiB (checks: quarter of that)")
        a(f"    s_lshr_b32 s{sT0}, s{sW}, 1")
        a(f"    s_lshl_b32 s{sT1}, s{sJ}, 1")
        a(f"    s_add_u32 s{sT1}, s{sT1}, s{sT2}")
        a(f"    s_lshl_b32 s{sT1}, s{sT1}, 1")
        a(f"    s_and_b32 s{sT2}, s{sW}, 1")
        a(f"    s_add_u32 s{sT1}, s{sT1}, s{sT2}")
        a(f"    s_lshl_b32 s{sT1}, s{sT1}, 1")
        a(f"    s_add_u32 s{sT1}, s{sT1}, s{sT0}")
        a(f"    s_mul_i32 s{sT1}, s{sT1}, 7")
        a(f"    s_lshl_b32 s{sHc}, s{sT1}, 8")
        a(f"    s_add_u32 s{sHc}, s{sHc}, {HC}")
        a(f"    s_lshl_b32 s{sHd0}, s{sT1}, 10")
        a(f"    s_add_u32 s{sHd0}, s{sHd0}, {HD}")
        a(f"    s_add_u32 s{sHd1}, s{sHd0}, s{s4K}")
        c("partials [s][reducer 8][column tile 4][source 8][16 columns x 16 B]: store s*64K + tt*32K + kh*4K + j*256, load s*64K + j*8K + wave*2K")
        a(f"    s_lshl_b32 s{sRed}, s{sS}, 16")
        a(f"    s_add_u32 s{sRed}, s{sRed}, {PB}")
        a(f"    s_lshl_b32 s{sT2}, s{sT2}, 15")
        a(f"    s_add_u32 s{sP}, s{sRed}, s{sT2}")
        a(f"    s_lshl_b32 s{sT2}, s{sT0}, 12")
        a(f"    s_add_u32 s{sP}, s{sP}, s{sT2}")
        a(f"    s_lshl_b32 s{sT2}, s{sJ}, 8")
        a(f"    s_add_u32 s{sP}, s{sP}, s{sT2}")
        a(f"    s_lshl_b32 s{sT2}, s{sJ}, 13")
        a(f"    s_add_u32 s{sRed}, s{sRed}, s{sT2}")
        a(f"    s_lshl_b32 s{sT2}, s{sW}, 11")
        a(f"    s_add_u32 s{sRed}, s{sRed}, s{sT2}")
        a(f"    s_mov_b32 s{sSel}, 0x07060500")
        for r in range(1,4):
            a(f"    s_add_u32 s{sSel+r}, s{sSel}, {r}")
        a(f"    v_lshlrev_b32 v{vL16}, 4, v{vL}")
        a(f"    v_lshlrev_b32 v{vH4}, 2, v{vL}")
        a(f"    v_mov_b32 v{vH16}, v{vL16}")
        c("K-half exchange in LDS: write RS + wave*2K, read RS + (wave^2)*2K")
        a(f"    s_add_u32 s{sT2}, s{sT2}, {RS}")
        a(f"    v_add_u32 v{vRw}, s{sT2}, v{vL16}")
        a(f"    v_xor_b32 v{vRr}, s{s4K}, v{vRw}")
        c("w_down transposing reads: kh*28672 + (16*(kg>>1) + 4*(kg&1) + (q>>2))*128 + ((a ^ 2kh ^ f)*32) + (q&3)*8, f = (lane>>3)&3")
        a(f"    v_lshrrev_b32 v{vT0}, 5, v{vL}")
        a(f"    v_lshlrev_b32 v{vT0}, 11, v{vT0}")
        a(f"    v_bfe_u32 v{vT3}, v{vL}, 2, 3")
        a(f"    v_lshl_add_u32 v{vT0}, v{vT3}, 7, v{vT0}")
        a(f"    v_and_b32 v{vT3}, 3, v{vL}")
        a(f"    v_lshl_add_u32 v{vT0}, v{vT3}, 3, v{vT0}")
        a(f"    s_and_b32 s{sT1}, s{sW}, 2")
        a(f"    v_and_b32 v{vT3}, 3, v{vT1}")
        a(f"    v_xor_b32 v{vT3}, s{sT1}, v{vT3}")
        a(f"    v_lshl_add_u32 v{vT0}, v{vT3}, 5, v{vT0}")
        a(f"    s_mul_i32 s{sT0}, s{sT0}, 28672")
        a(f"    v_add_u32 v{vD}, s{sT0}, v{vT0}")
        for ct in range(1,4):
            a(f"    v_xor_b32 v{vD+ct}, {ct*32}, v{vD}")
        c("partial store voffset = (lane>>4)*8K + (lane&15)*16, out voffset = (lane>>4)*2K + (lane&15)*2")
        a(f"    v_lshrrev_b32 v{vT0}, 4, v{vL}")
        a(f"    v_and_b32 v{vT3}, 15, v{vL}")
        a(f"    v_lshlrev_b32 v{vPs}, 13, v{vT0}")
        a(f"    v_lshl_add_u32 v{vPs}, v{vT3}, 4, v{vPs}")
        a(f"    v_lshlrev_b32 v{vOut}, 11, v{vT0}")
        a(f"    v_lshl_add_u32 v{vOut}, v{vT3}, 1, v{vOut}")
        a(f"    s_mov_b32 s{sSpin}, {SPIN}")
        c("placement marks: MK + j*128 + s*4")
        a(f"    s_lshl_b32 s{sMk}, s{sJ}, 7")
        a(f"    s_add_u32 s{sMk}, s{sMk}, {MK}")
        a(f"    v_and_b32 v{vMk}, 31, v{vL}")
        a(f"    v_lshl_add_u32 v{vMk}, v{vMk}, 2, s{sMk}")
        a(f"    s_lshl_b32 s{sT0}, s{sS}, 2")
        a(f"    s_add_u32 s{sMk}, s{sMk}, s{sT0}")
    def tag_from(lbl):
        c("tag = d_debug[0] ? d_debug[0] : next(epoch)")
        a(f"    v_readfirstlane_b32 s{sE}, v{vE}")
        a(f"    v_readfirstlane_b32 s{sDv}, v{vTag}")
        a("    s_nop 0")
        a(f"    s_add_u32 s{sE}, s{sE}, 0x01010101")
        a(f"    s_cmp_eq_u32 s{sE}, 0")
        a(f"    s_cselect_b32 s{sE}, 0x02020202, s{sE}")
        a(f"    s_cmp_eq_u32 s{sDv}, 0")
        a(f"    s_cselect_b32 s{sTag}, s{sE}, s{sDv}")
        a(f"    v_mov_b32 v{vTag}, s{sTag}")
        for r in range(4):
            a(f"    s_bfe_u32 s{sTB+r}, s{sTag}, {0x80000+8*r}")
        c("the epoch word read above was already the advanced one: withdraw the mark made from it (it would fit the next launch)")
        a(f"    s_cmp_eq_u32 s{sE}, s{sTag}")
        a(f"    s_cbranch_scc1 L_mk_{lbl}")
        emit([one_lane(f"    buffer_store_dword v{vTag}, off, s[{WS}:{WS+3}], s{sMk}")])
        a(f"L_mk_{lbl}:")
    def mark_op():
        return [f"    s_getreg_b32 s{sPC}, hwreg(HW_REG_XCC_ID, 0, 4)   ; mark = epoch + 0x5a + (die << 24)",
                f"    s_lshl_b32 s{sPC}, s{sPC}, 24",
                f"    s_add_u32 s{sPC}, s{sPC}, 0x5a",
                f"    v_add_u32 v{vMe}, s{sPC}, v{vE}"]+one_lane(f"    buffer_store_dword v{vMe}, off, s[{WS}:{WS+3}], s{sMk}")
    def hd(cc): a(f"    buffer_load_dwordx4 v[{FR+4*cc}:{FR+4*cc+3}], v{vH16}, s[{WS}:{WS+3}], s{sHd0 if cc<4 else sHd1} offen offset:{(cc%4)*1024} sc1")
    def hc(cc): a(f"    buffer_load_dword v{CK+cc}, v{vH4}, s[{WS}:{WS+3}], s{sHc} offen offset:{cc*256} sc1")
    def warm(): a(f"    s_call_b64 s[{sPC}:{sPC+1}], L_stub")

    a("L_up:")
    c("up role: fb = 7j + (s>>1) (64 hidden columns), mh = s&1 (token half)")
    c("gate/up DMA voffset = r8*7168 + (pos ^ (r8&2) [^4 for up])*16; x DMA voffset = r8*2048 + (pos ^ ((tid>>4)&7))*16")
    a(f"    v_and_b32 v{vT3}, 2, v{vT1}")
    a(f"    v_xor_b32 v{vT3}, v{vT3}, v{vT2}")
    a(f"    v_mul_u32_u24 v{vWg}, 7168, v{vT1}")
    a(f"    v_lshl_add_u32 v{vWg}, v{vT3}, 4, v{vWg}")
    a(f"    v_xor_b32 v{vWu}, 64, v{vWg}")
    a(f"    v_bfe_u32 v{vT3}, v0, 4, 3")
    a(f"    v_xor_b32 v{vT3}, v{vT3}, v{vT2}")
    a(f"    v_lshlrev_b32 v{vT3}, 4, v{vT3}")
    a(f"    v_lshl_add_u32 v{vX}, v{vT1}, 11, v{vT3}")
    a(f"    s_mul_i32 s{sWoff}, s{sJ}, 7")
    a(f"    s_lshr_b32 s{sT0}, s{sS}, 1")
    a(f"    s_add_u32 s{sWoff}, s{sWoff}, s{sT0}")
    a(f"    s_lshl_b32 s{sWoff}, s{sWoff}, 7")
    a(f"    s_mul_i32 s{sT0}, s{sW}, {8*7168}")
    a(f"    s_add_u32 s{sWoff}, s{sWoff}, s{sT0}")
    a(f"    s_and_b32 s{sSwap}, s{sS}, 1")
    a(f"    s_lshl_b32 s{sXoff}, s{sSwap}, 16")
    a(f"    s_lshl_b32 s{sT0}, s{sW}, 14")
    a(f"    s_add_u32 s{sXoff}, s{sXoff}, s{sT0}")
    a(f"    s_mov_b32 s{sR32}, {32*7168}")
    c("LDS slot (20 KiB): x 4K | gate rows 0-31 | gate rows 32-63 | up rows 0-31 | up rows 32-63; mh = 1 takes chunks 0,1 in the other order")
    def chunk_ops(ch):
        base=(ch%4)*SLOT
        m0first=f"    s_mov_b32 m0, s{sW1K}" if base==0 else f"    s_add_u32 m0, m0, s{s4K}"
        nxt=f"    s_add_u32 m0, m0, s{s4K}"
        if ch<2:
            pre=[f"    s_xor_b32 s{sT1}, s{sSwap}, {ch}",
                 f"    s_lshl_b32 s{sT0}, s{sT1}, 7",
                 f"    s_add_u32 s{sT0}, s{sT0}, s{sXoff}",
                 f"    s_mul_i32 s{sT1}, s{sT1}, {64*7168}",
                 m0first,
                 f"    s_add_u32 s{sT1}, s{sT1}, s{sWoff}"]
            o1=f"    s_nop 0"
        else:
            pre=[m0first, f"    s_add_u32 s{sT0}, s{sXoff}, {ch*128}"]
            o1=f"    s_add_u32 s{sT1}, s{sWoff}, {ch*64*7168}"
        return [pre+[f"    buffer_load_dwordx4 v{vX}, s[{X}:{X+3}], s{sT0} offen lds"],
                [nxt,o1,f"    buffer_load_dwordx4 v{vWg}, s[{G}:{G+3}], s{sT1} offen lds"],
                [nxt,f"    s_add_u32 s{sT2}, s{sT1}, s{sR32}",f"    buffer_load_dwordx4 v{vWg}, s[{G}:{G+3}], s{sT2} offen lds"],
                [nxt,"    s_nop 0",f"    buffer_load_dwordx4 v{vWu}, s[{U}:{U+3}], s{sT1} offen lds"],
                [nxt,"    s_nop 0",f"    buffer_load_dwordx4 v{vWu}, s[{U}:{U+3}], s{sT2} offen lds"]]
    ops0=chunk_ops(0)
    for l in ops0[0][:-1]: a(l)
    a("    s_waitcnt lgkmcnt(0)")
    a(ops0[0][-1]); emit(ops0[1:])
    emit(chunk_ops(1))
    a("L_hot_end:")
    a(f"    buffer_load_dword v{vE}, off, s[{WS}:{WS+3}], 0 sc1")
    late_kernargs()
    c("A operand (16 gate + 16 up columns): 4096 + mat*8192 + (8kg + (q>>2))*128 + ((wave ^ f)*32) + (q&3)*8")
    a(f"    v_bfe_u32 v{vT3}, v{vL}, 4, 1")
    a(f"    v_lshlrev_b32 v{vA}, 13, v{vT3}")
    a(f"    v_mul_u32_u24 v{vHsc}, {14*256}, v{vT3}")
    a(f"    v_lshrrev_b32 v{vT3}, 5, v{vL}")
    a(f"    v_lshl_add_u32 v{vA}, v{vT3}, 10, v{vA}")
    a(f"    v_lshl_add_u32 v{vHsc}, v{vT3}, 6, v{vHsc}")
    a(f"    v_bfe_u32 v{vA2}, v{vL}, 2, 2")
    a(f"    v_lshl_add_u32 v{vA}, v{vA2}, 7, v{vA}")
    a(f"    v_and_b32 v{vA2}, 3, v{vT1}")
    a(f"    v_xor_b32 v{vA2}, v{vA2}, v{vT0}")
    a(f"    v_lshl_add_u32 v{vA}, v{vA2}, 5, v{vA}")
    a(f"    v_and_b32 v{vA2}, 3, v{vL}")
    a(f"    v_lshl_add_u32 v{vA}, v{vA2}, 3, v{vA}")
    a(f"    v_add_u32 v{vA}, s{s4K}, v{vA}")
    a(f"    v_add_u32 v{vA2}, {2*SLOT}, v{vA}")
    c("B operand (32 tokens): token*128 + (((2*step + kg) ^ ((token>>1)&7))*16)")
    a(f"    v_bfe_u32 v{vB}, v{vL}, 1, 3")
    a(f"    v_xor_b32 v{vB}, v{vB}, v{vT3}")
    a(f"    v_lshlrev_b32 v{vB}, 4, v{vB}")
    a(f"    v_and_b32 v{vT3}, 31, v{vL}")
    a(f"    v_lshl_add_u32 v{vB}, v{vT3}, 7, v{vB}")
    for st in range(1,4):
        a(f"    v_xor_b32 v{vB+st}, {st*32}, v{vB}")
    a(f"    v_and_b32 v{vT3}, 15, v{vL}")
    a(f"    v_lshl_add_u32 v{vHsc}, v{vT3}, 2, v{vHsc}")
    a(f"    v_lshlrev_b32 v{vHs}, 2, v{vHsc}")
    common_setup()
    c("h store soffset: ((2j + mh)*56 + 4*(s>>1) + wave) * 512 B (checks: 128 B)")
    a(f"    s_lshl_b32 s{sT0}, s{sJ}, 1")
    a(f"    s_add_u32 s{sT0}, s{sT0}, s{sSwap}")
    a(f"    s_and_b32 s{sT1}, s{sS}, 14")
    a(f"    s_lshl_b32 s{sT1}, s{sT1}, 1")
    a(f"    s_add_u32 s{sT1}, s{sT1}, s{sW}")
    a(f"    s_mul_i32 s{sT2}, s{sT0}, 56")
    a(f"    s_add_u32 s{sT2}, s{sT2}, s{sT1}")
    a(f"    s_lshl_b32 s{sHs}, s{sT2}, 9")
    a(f"    s_add_u32 s{sHs}, s{sHs}, {HD}")
    a(f"    s_lshl_b32 s{sHsc}, s{sT2}, 7")
    a(f"    s_add_u32 s{sHsc}, s{sHsc}, {HC}")
    a(f"    s_mov_b32 s{sMask}, 0xffff0000")
    a(f"    s_mov_b32 s{sNl2e}, 0xbfb8aa3b              ; -log2(e)")
    warm()
    emit(chunk_ops(2))
    def wd_op(i):
        return [f"    s_mov_b32 m0, s{sW1K}" if i==0 else f"    s_add_u32 m0, m0, s{s4K}",
                f"    s_add_u32 s{sT0}, s{sWdA}, {i*32*2048}",
                f"    buffer_load_dwordx4 v{vWd}, s[{WD}:{WD+3}], s{sT0} offen lds"]
    def dsreads(ch, fr, lo=0, hi=4):
        base=(ch%4)*SLOT
        va,ab=(vA,base) if ch%4<2 else (vA2,base-2*SLOT)
        for st in range(lo,hi):
            fb=fr+8*st
            a(f"    ds_read_b64_tr_b16 v[{fb}:{fb+1}], v{va} offset:{ab+st*2048}")
            a(f"    ds_read_b64_tr_b16 v[{fb+2}:{fb+3}], v{va} offset:{ab+st*2048+512}")
            a(f"    ds_read_b128 v[{fb+4}:{fb+7}], v{vB+st} offset:{base}")
    def mfma(ch, fr, st):
        fb=fr+8*st
        src = "0" if (ch==0 and st==0) else f"v[{ACC}:{ACC+15}]"
        a(f"    v_mfma_f32_32x32x16_bf16 v[{ACC}:{ACC+15}], v[{fb}:{fb+3}], v[{fb+4}:{fb+7}], {src}")
    issued=[6,6,5]
    wdi=0
    c("iteration c: chunk c is multiplied, chunk c+1 is read from LDS, chunk c+4 is requested into the slot chunk c left")
    a(f"    s_waitcnt vmcnt({sum(issued[1:])})")
    a("    s_barrier")
    dsreads(0,FR)
    emit(chunk_ops(3)); issued.append(5)
    sched=(2,1,1,1); dsched=(2,2,0,0)
    for ch in range(15):
        cur,nxt=(FR,FR2) if ch%2==0 else (FR2,FR)
        c(f"--- c = {ch}")
        if ch==14:
            a("    s_waitcnt lgkmcnt(0)")
            for st in range(4): mfma(ch,cur,st)
            a(f"    s_waitcnt vmcnt({sum(issued[ch+2:])})")
            a("    s_barrier")
            dsreads(15,nxt)
            continue
        a(f"    s_waitcnt vmcnt({sum(issued[ch+2:])}) lgkmcnt(0)")
        a("    s_barrier")
        if ch+4<16: ops=chunk_ops(ch+4)
        else:
            n=WDN[ch-12]; ops=[wd_op(i) for i in range(wdi,wdi+n)]; wdi+=n
        if ch==0: ops.append([f"    buffer_load_dword v{vTag}, off, s[{DBG}:{DBG+3}], 0 sc1"])
        if ch==1: ops.append(mark_op())
        issued.append(len(ops))
        k=0; d=0
        sc=(0,0,0,0) if ch>=13 else sched
        for st in range(4):
            dsreads(ch+1,nxt,d,d+dsched[st]); d+=dsched[st]
            mfma(ch,cur,st)
            for _ in range(sc[st]):
                if k<len(ops): emit([ops[k]]); k+=1
        emit(ops[k:])
        if ch==4: tag_from('up')
    c("--- c = 15")
    for st in range(4):
        a(f"    s_waitcnt lgkmcnt({9-3*st})")
        mfma(15,FR2,st)
    a("    s_nop 11")
    c("h = bf16(bf16(silu(bf16(g))) * bf16(u)); g in v32..39, u in v40..47")
    T=FR
    for i in range(8): a(f"    v_cvt_pk_bf16_f32 v{ACC+i}, 0, v{ACC+i}")
    for i in range(4): a(f"    v_pk_mul_f32 v[{T+8+2*i}:{T+9+2*i}], v[{ACC+2*i}:{ACC+2*i+1}], s[{sMask}:{sNl2e}] op_sel:[0,1] op_sel_hi:[1,1]")
    for i in range(8):
        a(f"    v_exp_f32 v{T+8+i}, v{T+8+i}")
        if i>=4: a(f"    v_cvt_pk_bf16_f32 v{ACC+4+i}, 0, v{ACC+4+i}")
    for i in range(4): a(f"    v_pk_add_f32 v[{T+8+2*i}:{T+9+2*i}], v[{T+8+2*i}:{T+9+2*i}], 1.0 op_sel_hi:[1,0]")
    for i in range(8):
        a(f"    v_rcp_f32 v{T+8+i}, v{T+8+i}")
        if i>=4: a(f"    v_cvt_pk_bf16_f32 v{ACC+8+i}, 0, v{ACC+8+i}")
    for i in range(4): a(f"    v_pk_mul_f32 v[{ACC+2*i}:{ACC+2*i+1}], v[{ACC+2*i}:{ACC+2*i+1}], v[{T+8+2*i}:{T+9+2*i}]")
    for i in range(8): a(f"    v_cvt_pk_bf16_f32 v{ACC+i}, 0, v{ACC+i}")
    for i in range(4): a(f"    v_pk_mul_f32 v[{ACC+2*i}:{ACC+2*i+1}], v[{ACC+2*i}:{ACC+2*i+1}], v[{ACC+8+2*i}:{ACC+9+2*i}]")
    for i in range(4): a(f"    v_cvt_pk_bf16_f32 v{HV+i}, v{ACC+2*i}, v{ACC+2*i+1}")
    a(f"    buffer_store_dwordx4 v[{HV}:{HV+3}], v{vHs}, s[{WS}:{WS+3}], s{sHs} offen")
    a(f"    v_add3_u32 v{vHk}, v{HV}, v{HV+1}, v{HV+2}")
    a(f"    v_lshl_add_u32 v{vHk}, v{HV+3}, 1, v{vHk}")
    a(f"    v_xor_b32 v{vHk}, s{sTag}, v{vHk}")
    a(f"    buffer_store_dword v{vHk}, v{vHsc}, s[{WS}:{WS+3}], s{sHsc} offen")
    emit([wd_op(i) for i in range(wdi,14)])
    a("L_p2:")
    c("phase 2: the w_down slice is in LDS; h chunks and w_down fragments are fetched ahead of the MFMAs that use them")
    a("    s_waitcnt vmcnt(0)")
    a("L_p2_own:")
    a("    s_barrier")
    def wdread(cc,ct,jj):
        r=WF+(cc*4+ct)*4+2*jj
        a(f"    ds_read_b64_tr_b16 v[{r}:{r+1}], v{vD+ct} offset:{cc*4096+jj*1024}")
    def hash_step(cc,n):
        h=FR+4*cc
        if n==0: a(f"    v_add3_u32 v{vT0}, v{h}, v{h+1}, v{h+2}")
        if n==1: a(f"    v_lshl_add_u32 v{vT0}, v{h+3}, 1, v{vT0}")
        if n==2: a(f"    v_bitop3_b32 v{vAcc if cc==0 else (vT3 if cc%2 else vT0)}, v{vT0}, v{CK+cc}, v{vTag} bitop3:0x96")
        if n==3 and cc>0 and cc%2==0: a(f"    v_or3_b32 v{vAcc}, v{vAcc}, v{vT0}, v{vT3}")
    def hround(first):
        for cc in range(7):
            if first: a(f"    s_waitcnt vmcnt({2*(min(6,cc+FUSE-1)-cc)}) lgkmcnt({8 if cc<6 else 0})")
            else: a(f"    s_waitcnt vmcnt({12-2*cc})")
            h=FR+4*cc
            for n,ct in enumerate((2,3,0,1) if cc==6 else (0,1,2,3)):
                r=WF+(cc*4+ct)*4
                src="0" if cc==0 else f"v[{ACC+4*ct}:{ACC+4*ct+3}]"
                a(f"    v_mfma_f32_16x16x32_bf16 v[{ACC+4*ct}:{ACC+4*ct+3}], v[{h}:{h+3}], v[{r}:{r+3}], {src}")
                if first:
                    if cc+FUSE<7:
                        if n==0: hd(cc+FUSE)
                        if n==1: hc(cc+FUSE)
                    if cc+2<7:
                        wdread(cc+2,ct,0); wdread(cc+2,ct,1)
                hash_step(cc,n)
            if first and cc==5:
                c("a workgroup of this group is on another die (or not heard from): publish h at device scope as well")
                a(f"    v_cmp_ne_u32 vcc, v{vMk}, v{vMe}")
                a("    s_cbranch_vccnz L_pub")
                a("L_pub_done:")
        a("    s_nop 1")
        a(f"    v_cmp_ne_u32 vcc, 0, v{vAcc}")
        a("    s_cbranch_vccnz L_h_retry")
    for cc in range(FUSE):
        hd(cc); hc(cc)
        if cc==0: a(f"    buffer_load_dword v{vMk}, v{vMk}, s[{WS}:{WS+3}], 0 offen sc1")
        if cc<2:
            for ct in range(4):
                for jj in range(2): wdread(cc,ct,jj)
    hround(True)
    a("L_h_ok:")
    c("add the other K half (wave ^ 2), tag and send the partial sums")
    a(f"    ds_write_b128 v{vRw}, v[{ACC+8}:{ACC+11}]")
    a(f"    ds_write_b128 v{vRw}, v[{ACC+12}:{ACC+15}] offset:1024")
    a(f"    s_mov_b32 s{sSpin}, {SPIN}")
    a("    s_waitcnt lgkmcnt(0)")
    a("    s_barrier")
    a(f"    ds_read_b128 v[{FR}:{FR+3}], v{vRr}")
    a(f"    ds_read_b128 v[{FR+4}:{FR+7}], v{vRr} offset:1024")
    for q in range(2):
        a(f"    s_waitcnt lgkmcnt({1-q})")
        for i in range(2):
            r=4*q+2*i
            a(f"    v_pk_add_f32 v[{ACC+r}:{ACC+r+1}], v[{ACC+r}:{ACC+r+1}], v[{FR+r}:{FR+r+1}]")
        for r in range(4):
            a(f"    v_perm_b32 v{FR+8+4*q+r}, v{ACC+4*q+r}, v{vTag}, s{sSel+r}")
        a(f"    buffer_store_dwordx4 v[{FR+8+4*q}:{FR+11+4*q}], v{vPs}, s[{WS}:{WS+3}], s{sP} offen offset:{q*2048} sc1")
    R0=WF
    a("    s_waitcnt vmcnt(0)")
    a("L_r:")
    c("phase 3: 8 sources x 16 columns x 4 tokens per wave")
    for i in range(2):
        a(f"    buffer_load_dwordx4 v[{R0+4*i}:{R0+4*i+3}], v{vL16}, s[{WS}:{WS+3}], s{sRed} offen offset:{i*1024} sc1")
    for i in range(2):
        a(f"    s_waitcnt vmcnt({1-i})")
        for r in range(4):
            a(f"    v_xor_b32 v{R0+4*i+r}, s{sTB+r}, v{R0+4*i+r}")
        if i==0:
            a(f"    v_or3_b32 v{vAcc}, v{R0}, v{R0+1}, v{R0+2}")
        else:
            a(f"    v_or3_b32 v{vAcc}, v{vAcc}, v{R0+3}, v{R0+4}")
            a(f"    v_or3_b32 v{vT0}, v{R0+5}, v{R0+6}, v{R0+7}")
    a(f"    v_pk_add_f32 v[{ACC}:{ACC+1}], v[{R0}:{R0+1}], v[{R0+4}:{R0+5}]")
    a(f"    v_pk_add_f32 v[{ACC+2}:{ACC+3}], v[{R0+2}:{R0+3}], v[{R0+6}:{R0+7}]")
    a(f"    v_or_b32 v{vAcc}, v{vAcc}, v{vT0}")
    a(f"    v_and_b32 v{vAcc}, 0xff, v{vAcc}")
    a(f"    v_cmp_ne_u32 vcc, 0, v{vAcc}")
    a("    s_cbranch_vccnz L_r_retry")
    a(f"    v_permlane32_swap_b32 v{ACC}, v{ACC+2}")
    a(f"    v_permlane32_swap_b32 v{ACC+1}, v{ACC+3}")
    a("    s_nop 0")
    a(f"    v_pk_add_f32 v[{ACC}:{ACC+1}], v[{ACC}:{ACC+1}], v[{ACC+2}:{ACC+3}]")
    a("    s_nop 1")
    a(f"    v_permlane16_swap_b32 v{ACC}, v{ACC+1}")
    a("    s_nop 1")
    a(f"    v_add_f32 v{ACC}, v{ACC}, v{ACC+1}")
    a(f"    v_cvt_pk_bf16_f32 v{ACC}, v{ACC}, v{ACC}")
    a(f"    buffer_store_short v{ACC}, v{vOut}, s[{OUT}:{OUT+3}], s{sOut} offen")
    a("L_end:")
    a("    s_endpgm")
    a("L_stub:")
    a(f"    s_setpc_b64 s[{sPC}:{sPC+1}]")
    a("L_r_retry:")
    a(f"    s_sub_u32 s{sSpin}, s{sSpin}, 1")
    a("    s_cbranch_scc0 L_r")
    a("    s_endpgm")
    a("L_pub:")
    c("(prefetch-role waves have out-of-range offsets here: nothing is stored)")
    a(f"    s_add_u32 s{sHs}, s{sHs}, {HB}")
    a(f"    s_add_u32 s{sHsc}, s{sHsc}, {HB}")
    a(f"    buffer_store_dwordx4 v[{HV}:{HV+3}], v{vHs}, s[{WS}:{WS+3}], s{sHs} offen sc1")
    a(f"    buffer_store_dword v{vHk}, v{vHsc}, s[{WS}:{WS+3}], s{sHsc} offen sc1")
    a(f"    v_mov_b32 v{vMk}, v{vMe}")
    a("    s_waitcnt vmcnt(0)")
    a("    s_branch L_pub_done")
    a("L_h_retry:")
    a(f"    s_sub_u32 s{sSpin}, s{sSpin}, 1")
    a("    s_cbranch_scc1 L_end")
    a(f"    s_cmp_gt_u32 s{sSpin}, {SPIN-N0}")
    a("    s_cbranch_scc1 L_h")
    a(f"    v_xor_b32 v{vH16}, {HB}, v{vH16}")
    a(f"    v_xor_b32 v{vH4}, {HB}, v{vH4}")
    a("L_h:")
    for cc in range(7): hd(cc); hc(cc)
    hround(False)
    a("    s_branch L_h_ok")
    a("L_pf_other:")
    a("    s_waitcnt vmcnt(0)")
    a("L_pf_rest:")
    late_kernargs()
    common_setup()
    c("workgroups 14,15 share their w_down slice with 30,31: start at the other half")
    a(f"    s_add_u32 s{sWdB}, s{sWdA}, {7*32*2048}")
    a(f"    s_add_u32 s{sMB}, s{sW1K}, {7*4096}")
    a(f"    s_cmp_lt_u32 s{sS}, 16")
    a(f"    s_cselect_b32 s{sT0}, s{sWdB}, s{sWdA}")
    a(f"    s_cselect_b32 s{sWdB}, s{sWdA}, s{sWdB}")
    a(f"    s_mov_b32 s{sWdA}, s{sT0}")
    a(f"    s_cselect_b32 s{sMA}, s{sMB}, s{sW1K}")
    a(f"    s_cselect_b32 s{sMB}, s{sW1K}, s{sMB}")
    a(f"    v_mov_b32 v{vHs}, 0x7ffffff0")
    a(f"    v_mov_b32 v{vHsc}, v{vHs}")
    a(f"    s_mov_b32 s{sHs}, 0")
    a(f"    s_mov_b32 s{sHsc}, 0")
    for r in range(4): a(f"    v_mov_b32 v{HV+r}, 0")
    a(f"    v_mov_b32 v{vHk}, 0")
    c("the epoch word has arrived before d_debug[0] is read (waves 1-3 waited at L_pf_other)")
    a(f"    s_waitcnt vmcnt({npf}) lgkmcnt(0)")
    a(f"    buffer_load_dword v{vTag}, off, s[{DBG}:{DBG+3}], 0 sc1")
    c("wave 1 of p<9: bring the group's h lines (448 data + 112 check) into L2 so that the producers' stores hit")
    a(f"    s_cmp_lg_u32 s{sW}, 1")
    a("    s_cbranch_scc1 L_pf_notouch")
    a(f"    s_mul_i32 s{sT0}, s{sJ}, {14*4096}")
    a(f"    s_lshl_b32 s{sT1}, s{sSwap}, 13")
    a(f"    s_add_u32 s{sT0}, s{sT0}, s{sT1}")
    a(f"    s_add_u32 s{sT0}, s{sT0}, {HD}")
    a(f"    s_mul_i32 s{sT2}, s{sJ}, {14*1024}")
    a(f"    s_add_u32 s{sT2}, s{sT2}, s{sT1}")
    a(f"    s_add_u32 s{sT2}, s{sT2}, {HC-7*8192}")
    a(f"    s_cmp_ge_u32 s{sSwap}, 7")
    a(f"    s_cselect_b32 s{sT0}, s{sT2}, s{sT0}")
    a(f"    s_cmp_ge_u32 s{sSwap}, 9")
    a("    s_cbranch_scc1 L_pf_notouch")
    a(f"    v_lshlrev_b32 v{vT3}, 7, v{vL}")
    a(f"    buffer_load_dword v{vDum}, v{vT3}, s[{WS}:{WS+3}], s{sT0} offen")
    a("L_pf_notouch:")
    c("wave 0: lines with address bits [9:7] == 3 get half the L1 miss slots; spread those w_down columns (nb 3, 11) over all p")
    a(f"    s_cmp_lg_u32 s{sW}, 0")
    a("    s_cbranch_scc1 L_pf_noc3")
    a(f"    s_mul_i32 s{sT0}, s{sSwap}, 25")
    a(f"    s_mul_i32 s{sT1}, s{sJ}, 448")
    a(f"    s_add_u32 s{sT1}, s{sT1}, s{sT0}")
    a(f"    s_lshl_b32 s{sT1}, s{sT1}, 11")
    a(f"    v_min_u32 v{vT3}, 49, v{vL}")
    a(f"    v_lshlrev_b32 v{vT3}, 10, v{vT3}")
    a(f"    buffer_load_dword v{vDum}, v{vT3}, s[{WD}:{WD+3}], s{sT1} offen offset:384")
    a("L_pf_noc3:")
    a(f"    s_lshl_b32 s{sT2}, s2, 2")
    a(f"    s_add_u32 s{sT2}, s{sT2}, s{sW}")
    a(f"    buffer_load_dword v{vDum}, v{vMk}, s[{WS}:{WS+3}], 0 offen")
    emit([mark_op()])
    a("    s_barrier")
    for i in range(14):
        sm,sw=(sMA,sWdA) if i<7 else (sMB,sWdB)
        a(f"    s_mov_b32 m0, s{sm}" if i%7==0 else f"    s_add_u32 m0, m0, s{s4K}")
        a(f"    s_add_u32 s{sT0}, s{sw}, {(i%7)*32*2048}")
        a(f"    buffer_load_dwordx4 v{vWd}, s[{WD}:{WD+3}], s{sT0} offen lds")
    warm()
    a("    s_waitcnt vmcnt(14)")
    tag_from('pf')
    c("epoch owner (wave 1 of workgroup 157): publish the tag in d_debug[0], advance the epoch word once that store is done")
    a(f"    s_cmp_lg_u32 s{sT2}, {157*4+1}")
    a("    s_cbranch_scc1 L_p2")
    emit([one_lane(f"    buffer_store_dword v{vTag}, off, s[{DBG}:{DBG+3}], 0 sc1")])
    a("    s_waitcnt vmcnt(0)")
    emit([one_lane(f"    buffer_store_dword v{vTag}, off, s[{WS}:{WS+3}], 0")])
    a("L_last:")
    a("    s_branch L_p2_own")
    a('.section .rodata,"a"')
    a(".p2align 6")
    kernel_desc(a,NAME,NV,80,NV)
    open(path,"w").write(a.text())

if __name__=="__main__":
    gen(sys.argv[1] if len(sys.argv)>1 else "final.s")
```

```python
import sys
from asmlib import *
NAME="standalone__swiglu_ffn__sampling_kernel"
M,D,F=64,1024,3584
MK=0x1000; HD=0x10000; HC=0x80000; PB=0x100000; HB=0x400000; EP=0x4ff000; WSN=0x500000
SPIN=1<<18; N0=24
SLOT=20480; RS=57344
SPLIT=7; XLEAD=3; FUSE=4; WDN=(5,2)

DOC = """;
;
;
;
"""

def gen(path):
    a=Asm()
    a(HEADER.rstrip())
    a("; @launch grid=(256,1,1) block=(256,1,1) lds=81920")
    a(DOC.rstrip())
    a('.amdgcn_target "amdgcn-amd-amdhsa--gfx950"')
    a(".text")
    kernel_begin(a,NAME)
    c=lambda t: a("    ; "+t)
    X,G,U,WD,OUT,DBG,WS=4,8,12,16,20,24,28
    sJ,sS,sW,sW1K=32,33,34,35
    sT0,sT1,sT2=36,37,38
    sWoff,sXoff,sSwap=39,40,41
    sWdA,sWdB,sMA,sMB=42,43,44,45
    sTag=46
    sTB=48; sSel=52
    sHd0,sHd1,sHc=56,57,58
    sP,sRed,sOut=59,60,61
    sMask,sNl2e=62,63
    sHs,sHsc,s4K,sR32=64,65,66,67
    sPC=68
    sMk,sEp,sSpin=70,71,73
    sE,sDv=74,75
    vL=1; vT0,vT1,vT2,vT3=2,3,4,5
    vWg,vWu,vX,vA,vA2=6,7,8,9,10
    vB=11; vWd=15; vD=16
    vTag=20; vL16=21; vDum=22; vRw=23
    vHs=24; vHsc=25; vPs=26; vOut=27; vAcc=28; vH16=29; vH4=30; vRr=31
    ACC=32; FR=48; CK=76; WF=84; FR2=84
    HV=196; vHk=200; vMk=201; vMe=202; vE=203
    NV=208
    def emit(ops):
        for op in ops:
            for l in op: a(l)
    def one_lane(instr):
        return ["    s_mov_b64 exec, 1", instr, "    s_mov_b64 exec, -1"]
    c("entry: everything up to L_hot_end is kept inside the first 768 bytes (what the fetcher has ready at start)")
    a(f"    s_lshr_b32 s{sS}, s2, 3")
    a(f"    s_cmp_ge_u32 s{sS}, 32")
    a("    s_cbranch_scc1 L_end")
    for i,b in ((0,X),(1,G),(2,U),(6,WS)):
        a(f"    s_load_dwordx2 s[{b}:{b+1}], s[0:1], {8*i}")
    c("pull this kernel's own code into L2")
    a(f"    s_getpc_b64 s[{sPC}:{sPC+1}]")
    a("L_pc:")
    a(f"    v_lshlrev_b32 v{vT3}, 7, v0")
    a(f"    v_min_u32 v{vT3}, L_last-L_pc, v{vT3}")
    a(f"    global_load_dword v{vDum}, v{vT3}, s[{sPC}:{sPC+1}]")
    a(f"    v_lshrrev_b32 v{vT0}, 6, v0                 ; wave")
    a(f"    v_and_b32 v{vL}, 63, v0                    ; lane")
    a(f"    s_and_b32 s{sJ}, s2, 7")
    a(f"    v_readfirstlane_b32 s{sW}, v{vT0}")
    a(f"    s_mov_b32 s{X+3}, 0x20000")
    a(f"    s_mov_b32 s{X+2}, s{X+3}")
    a(f"    s_mov_b32 s{G+2}, {D*F*2}")
    a(f"    s_mov_b32 s{G+3}, s{X+3}")
    a(f"    s_mov_b32 s{U+2}, s{G+2}")
    a(f"    s_mov_b32 s{U+3}, s{X+3}")
    a(f"    s_mov_b32 s{WS+2}, {WSN}")
    a(f"    s_mov_b32 s{WS+3}, s{X+3}")
    a(f"    s_mov_b32 s{sEp}, {EP}")
    a(f"    v_lshrrev_b32 v{vT1}, 3, v{vL}")
    a(f"    v_and_b32 v{vT2}, 7, v{vL}")
    a(f"    s_lshl_b32 s{sW1K}, s{sW}, 10")
    a(f"    s_movk_i32 s{s4K}, 4096")
    a(f"    s_cmp_lt_u32 s{sS}, 14")
    a("    s_cbranch_scc1 L_up")
    c("prefetch role: p = 0..17, the workgroups with the fewest w_down misses (30,31,14,15,19,27) come first")
    a(f"    s_sub_u32 s{sSwap}, s{sS}, 12")
    a(f"    s_cmp_ge_u32 s{sSwap}, 18")
    a(f"    s_cselect_b32 s{sT0}, 18, 0")
    a(f"    s_sub_u32 s{sSwap}, s{sSwap}, s{sT0}")
    a(f"    s_movk_i32 s{sT1}, 0x90")
    a(f"    s_bitcmp1_b32 s{sT1}, s{sSwap}")
    a(f"    s_cselect_b32 s{sT0}, 3, 0")
    a(f"    s_mov_b32 s{sT1}, 0x8020")
    a(f"    s_bitcmp1_b32 s{sT1}, s{sSwap}")
    a(f"    s_cselect_b32 s{sT0}, 10, s{sT0}")
    a(f"    s_xor_b32 s{sSwap}, s{sSwap}, s{sT0}")
    a(f"    s_cmp_eq_u32 s{sW}, 0")
    a("    s_cbranch_scc1 L_pf_w0")
    a("    s_waitcnt lgkmcnt(0)")
    a(f"    buffer_load_dword v{vE}, off, s[{WS}:{WS+3}], s{sEp} sc1")
    a("    s_branch L_pf_other")
    a("L_pf_w0:")
    rr=9*SPLIT; R=-(-1024//rr)
    c(f"wave 0: even p w_gate, odd p w_up; a request covers {SPLIT} rows x 7 lines, all p together {rr} rows (rows past 1023 are out of range)")
    a(f"    v_min_u32 v{vT3}, {7*SPLIT-1}, v{vL}")
    a(f"    v_mul_u32_u24 v{vWg}, 37, v{vT3}")
    a(f"    v_lshrrev_b32 v{vWg}, 8, v{vWg}              ; lane/7")
    a(f"    v_mul_u32_u24 v{vWg}, {7168-7*128}, v{vWg}")
    a(f"    v_lshl_add_u32 v{vWg}, v{vT3}, 7, v{vWg}")
    a(f"    v_lshlrev_b32 v{vX}, 11, v{vL}")
    a(f"    s_mul_i32 s{sWoff}, s{sJ}, 896")
    a(f"    s_lshr_b32 s{sT0}, s{sSwap}, 1")
    a(f"    s_mul_i32 s{sT0}, s{sT0}, {SPLIT*7168}")
    a(f"    s_add_u32 s{sWoff}, s{sWoff}, s{sT0}")
    a(f"    s_lshl_b32 s{sXoff}, s{sSwap}, 7")
    a(f"    s_cmp_ge_u32 s{sSwap}, 16")
    a(f"    s_cselect_b32 s{sXoff}, s{X+2}, s{sXoff}")
    a(f"    s_mov_b32 s{sT1}, {R}")
    c(f"chunk p of x is requested {XLEAD} rounds before its rows of w")
    a(f"    s_mul_i32 s{sT2}, s{sSwap}, {int(64*64/rr)}")
    a(f"    s_lshr_b32 s{sT2}, s{sT2}, 6")
    a(f"    s_sub_i32 s{sT2}, s{sT2}, {XLEAD}")
    a(f"    s_max_i32 s{sT2}, s{sT2}, 0")
    a(f"    s_min_i32 s{sT2}, s{sT2}, {R-1}")
    a(f"    s_sub_u32 s{sT2}, {R}, s{sT2}")
    a(f"    s_bitcmp1_b32 s{sSwap}, 0")
    a("    s_waitcnt lgkmcnt(0)")
    a(f"    s_cselect_b64 s[{G}:{G+1}], s[{U}:{U+1}], s[{G}:{G+1}]")
    a(f"    buffer_load_dword v{vE}, off, s[{WS}:{WS+3}], s{sEp} sc1")
    a("L_pf_loop:")
    a(f"    s_cmp_lg_u32 s{sT1}, s{sT2}")
    a("    s_cbranch_scc1 L_pf_nox")
    a(f"    buffer_load_dword v{vDum}, v{vX}, s[{X}:{X+3}], s{sXoff} offen")
    a("L_pf_nox:")
    a(f"    buffer_load_dword v{vDum}, v{vWg}, s[{G}:{G+3}], s{sWoff} offen")
    a(f"    s_add_u32 s{sWoff}, s{sWoff}, {rr*7168}")
    a(f"    s_sub_u32 s{sT1}, s{sT1}, 1")
    a(f"    s_cmp_lg_u32 s{sT1}, 0")
    a("    s_cbranch_scc1 L_pf_loop")
    npf=R+1
    a("    s_branch L_pf_rest")

    def late_kernargs():
        for i,b in ((3,WD),(4,OUT),(5,DBG)):
            a(f"    s_load_dwordx2 s[{b}:{b+1}], s[0:1], {8*i}")
        a(f"    s_mov_b32 s{WD+2}, s{G+2}")
        a(f"    s_mov_b32 s{WD+3}, s{X+3}")
        a(f"    s_mov_b32 s{OUT+2}, s{X+3}")
        a(f"    s_mov_b32 s{OUT+3}, s{X+3}")
        a(f"    s_movk_i32 s{DBG+2}, 256")
        a(f"    s_mov_b32 s{DBG+3}, s{X+3}")
    def common_setup():
        c("phase 2/3 addresses.  nb = s&15 (output columns), mh2 = s>>4 (token half), tt = wave&1, kh = wave>>1")
        c("w_down DMA: voffset = r8*2048 + (pos ^ (r8&6))*16, soffset = (448j + 8*wave + 32i)*2048 + nb*128")
        a(f"    v_and_b32 v{vT3}, 6, v{vT1}")
        a(f"    v_xor_b32 v{vT3}, v{vT3}, v{vT2}")
        a(f"    v_lshlrev_b32 v{vT3}, 4, v{vT3}")
        a(f"    v_lshl_add_u32 v{vWd}, v{vT1}, 11, v{vT3}")
        a(f"    s_mul_i32 s{sWdA}, s{sJ}, {448*2048}")
        a(f"    s_and_b32 s{sT0}, s{sS}, 15")
        a(f"    s_lshl_b32 s{sT0}, s{sT0}, 7")
        a(f"    s_add_u32 s{sWdA}, s{sWdA}, s{sT0}")
        a(f"    s_lshl_b32 s{sT1}, s{sW}, 14")
        a(f"    s_add_u32 s{sWdA}, s{sWdA}, s{sT1}")
        c("out soffset = (32*mh2 + 4j)*2048 + nb*128 + wave*32")
        a(f"    s_lshr_b32 s{sT2}, s{sS}, 4")
        a(f"    s_lshl_b32 s{sOut}, s{sT2}, 16")
        a(f"    s_add_u32 s{sOut}, s{sOut}, s{sT0}")
        a(f"    s_lshl_b32 s{sT0}, s{sJ}, 13")
        a(f"    s_add_u32 s{sOut}, s{sOut}, s{sT0}")
        a(f"    s_lshl_b32 s{sT0}, s{sW}, 5")
        a(f"    s_add_u32 s{sOut}, s{sOut}, s{sT0}")
        c("h soffsets: ((4j + 2*mh2 + tt)*14 + 7*kh + cc) KiB (checks: quarter of that)")
        a(f"    s_lshr_b32 s{sT0}, s{sW}, 1")
        a(f"    s_lshl_b32 s{sT1}, s{sJ}, 1")
        a(f"    s_add_u32 s{sT1}, s{sT1}, s{sT2}")
        a(f"    s_lshl_b32 s{sT1}, s{sT1}, 1")
        a(f"    s_and_b32 s{sT2}, s{sW}, 1")
        a(f"    s_add_u32 s{sT1}, s{sT1}, s{sT2}")
        a(f"    s_lshl_b32 s{sT1}, s{sT1}, 1")
        a(f"    s_add_u32 s{sT1}, s{sT1}, s{sT0}")
        a(f"    s_mul_i32 s{sT1}, s{sT1}, 7")
        a(f"    s_lshl_b32 s{sHc}, s{sT1}, 8")
        a(f"    s_add_u32 s{sHc}, s{sHc}, {HC}")
        a(f"    s_lshl_b32 s{sHd0}, s{sT1}, 10")
        a(f"    s_add_u32 s{sHd0}, s{sHd0}, {HD}")
        a(f"    s_add_u32 s{sHd1}, s{sHd0}, s{s4K}")
        c("partials [s][reducer 8][column tile 4][source 8][16 columns x 16 B]: store s*64K + tt*32K + kh*4K + j*256, load s*64K + j*8K + wave*2K")
        a(f"    s_lshl_b32 s{sRed}, s{sS}, 16")
        a(f"    s_add_u32 s{sRed}, s{sRed}, {PB}")
        a(f"    s_lshl_b32 s{sT2}, s{sT2}, 15")
        a(f"    s_add_u32 s{sP}, s{sRed}, s{sT2}")
        a(f"    s_lshl_b32 s{sT2}, s{sT0}, 12")
        a(f"    s_add_u32 s{sP}, s{sP}, s{sT2}")
        a(f"    s_lshl_b32 s{sT2}, s{sJ}, 8")
        a(f"    s_add_u32 s{sP}, s{sP}, s{sT2}")
        a(f"    s_lshl_b32 s{sT2}, s{sJ}, 13")
        a(f"    s_add_u32 s{sRed}, s{sRed}, s{sT2}")
        a(f"    s_lshl_b32 s{sT2}, s{sW}, 11")
        a(f"    s_add_u32 s{sRed}, s{sRed}, s{sT2}")
        a(f"    s_mov_b32 s{sSel}, 0x07060500")
        for r in range(1,4):
            a(f"    s_add_u32 s{sSel+r}, s{sSel}, {r}")
        a(f"    v_lshlrev_b32 v{vL16}, 4, v{vL}")
        a(f"    v_lshlrev_b32 v{vH4}, 2, v{vL}")
        a(f"    v_mov_b32 v{vH16}, v{vL16}")
        c("K-half exchange in LDS: write RS + wave*2K, read RS + (wave^2)*2K")
        a(f"    s_add_u32 s{sT2}, s{sT2}, {RS}")
        a(f"    v_add_u32 v{vRw}, s{sT2}, v{vL16}")
        a(f"    v_xor_b32 v{vRr}, s{s4K}, v{vRw}")
        c("w_down transposing reads: kh*28672 + (16*(kg>>1) + 4*(kg&1) + (q>>2))*128 + ((a ^ 2kh ^ f)*32) + (q&3)*8, f = (lane>>3)&3")
        a(f"    v_lshrrev_b32 v{vT0}, 5, v{vL}")
        a(f"    v_lshlrev_b32 v{vT0}, 11, v{vT0}")
        a(f"    v_bfe_u32 v{vT3}, v{vL}, 2, 3")
        a(f"    v_lshl_add_u32 v{vT0}, v{vT3}, 7, v{vT0}")
        a(f"    v_and_b32 v{vT3}, 3, v{vL}")
        a(f"    v_lshl_add_u32 v{vT0}, v{vT3}, 3, v{vT0}")
        a(f"    s_and_b32 s{sT1}, s{sW}, 2")
        a(f"    v_and_b32 v{vT3}, 3, v{vT1}")
        a(f"    v_xor_b32 v{vT3}, s{sT1}, v{vT3}")
        a(f"    v_lshl_add_u32 v{vT0}, v{vT3}, 5, v{vT0}")
        a(f"    s_mul_i32 s{sT0}, s{sT0}, 28672")
        a(f"    v_add_u32 v{vD}, s{sT0}, v{vT0}")
        for ct in range(1,4):
            a(f"    v_xor_b32 v{vD+ct}, {ct*32}, v{vD}")
        c("partial store voffset = (lane>>4)*8K + (lane&15)*16, out voffset = (lane>>4)*2K + (lane&15)*2")
        a(f"    v_lshrrev_b32 v{vT0}, 4, v{vL}")
        a(f"    v_and_b32 v{vT3}, 15, v{vL}")
        a(f"    v_lshlrev_b32 v{vPs}, 13, v{vT0}")
        a(f"    v_lshl_add_u32 v{vPs}, v{vT3}, 4, v{vPs}")
        a(f"    v_lshlrev_b32 v{vOut}, 11, v{vT0}")
        a(f"    v_lshl_add_u32 v{vOut}, v{vT3}, 1, v{vOut}")
        a(f"    s_mov_b32 s{sSpin}, {SPIN}")
        c("placement marks: MK + j*128 + s*4")
        a(f"    s_lshl_b32 s{sMk}, s{sJ}, 7")
        a(f"    s_add_u32 s{sMk}, s{sMk}, {MK}")
        a(f"    v_and_b32 v{vMk}, 31, v{vL}")
        a(f"    v_lshl_add_u32 v{vMk}, v{vMk}, 2, s{sMk}")
        a(f"    s_lshl_b32 s{sT0}, s{sS}, 2")
        a(f"    s_add_u32 s{sMk}, s{sMk}, s{sT0}")
    def tag_from(lbl):
        c("tag = d_debug[0] ? d_debug[0] : next(epoch)")
        a(f"    v_readfirstlane_b32 s{sE}, v{vE}")
        a(f"    v_readfirstlane_b32 s{sDv}, v{vTag}")
        a("    s_nop 0")
        a(f"    s_add_u32 s{sE}, s{sE}, 0x01010101")
        a(f"    s_cmp_eq_u32 s{sE}, 0")
        a(f"    s_cselect_b32 s{sE}, 0x02020202, s{sE}")
        a(f"    s_cmp_eq_u32 s{sDv}, 0")
        a(f"    s_cselect_b32 s{sTag}, s{sE}, s{sDv}")
        a(f"    v_mov_b32 v{vTag}, s{sTag}")
        for r in range(4):
            a(f"    s_bfe_u32 s{sTB+r}, s{sTag}, {0x80000+8*r}")
        c("the epoch word read above was already the advanced one: withdraw the mark made from it (it would fit the next launch)")
        a(f"    s_cmp_eq_u32 s{sE}, s{sTag}")
        a(f"    s_cbranch_scc1 L_mk_{lbl}")
        emit([one_lane(f"    buffer_store_dword v{vTag}, off, s[{WS}:{WS+3}], s{sMk}")])
        a(f"L_mk_{lbl}:")
    def mark_op():
        return [f"    s_getreg_b32 s{sPC}, hwreg(HW_REG_XCC_ID, 0, 4)   ; mark = epoch + 0x5a + (die << 24)",
                f"    s_lshl_b32 s{sPC}, s{sPC}, 24",
                f"    s_add_u32 s{sPC}, s{sPC}, 0x5a",
                f"    v_add_u32 v{vMe}, s{sPC}, v{vE}"]+one_lane(f"    buffer_store_dword v{vMe}, off, s[{WS}:{WS+3}], s{sMk}")
    def hd(cc): a(f"    buffer_load_dwordx4 v[{FR+4*cc}:{FR+4*cc+3}], v{vH16}, s[{WS}:{WS+3}], s{sHd0 if cc<4 else sHd1} offen offset:{(cc%4)*1024} sc1")
    def hc(cc): a(f"    buffer_load_dword v{CK+cc}, v{vH4}, s[{WS}:{WS+3}], s{sHc} offen offset:{cc*256} sc1")
    def warm(): a(f"    s_call_b64 s[{sPC}:{sPC+1}], L_stub")

    a("L_up:")
    c("up role: fb = 7j + (s>>1) (64 hidden columns), mh = s&1 (token half)")
    c("gate/up DMA voffset = r8*7168 + (pos ^ (r8&2) [^4 for up])*16; x DMA voffset = r8*2048 + (pos ^ ((tid>>4)&7))*16")
    a(f"    v_and_b32 v{vT3}, 2, v{vT1}")
    a(f"    v_xor_b32 v{vT3}, v{vT3}, v{vT2}")
    a(f"    v_mul_u32_u24 v{vWg}, 7168, v{vT1}")
    a(f"    v_lshl_add_u32 v{vWg}, v{vT3}, 4, v{vWg}")
    a(f"    v_xor_b32 v{vWu}, 64, v{vWg}")
    a(f"    v_bfe_u32 v{vT3}, v0, 4, 3")
    a(f"    v_xor_b32 v{vT3}, v{vT3}, v{vT2}")
    a(f"    v_lshlrev_b32 v{vT3}, 4, v{vT3}")
    a(f"    v_lshl_add_u32 v{vX}, v{vT1}, 11, v{vT3}")
    a(f"    s_mul_i32 s{sWoff}, s{sJ}, 7")
    a(f"    s_lshr_b32 s{sT0}, s{sS}, 1")
    a(f"    s_add_u32 s{sWoff}, s{sWoff}, s{sT0}")
    a(f"    s_lshl_b32 s{sWoff}, s{sWoff}, 7")
    a(f"    s_mul_i32 s{sT0}, s{sW}, {8*7168}")
    a(f"    s_add_u32 s{sWoff}, s{sWoff}, s{sT0}")
    a(f"    s_and_b32 s{sSwap}, s{sS}, 1")
    a(f"    s_lshl_b32 s{sXoff}, s{sSwap}, 16")
    a(f"    s_lshl_b32 s{sT0}, s{sW}, 14")
    a(f"    s_add_u32 s{sXoff}, s{sXoff}, s{sT0}")
    a(f"    s_mov_b32 s{sR32}, {32*7168}")
    c("LDS slot (20 KiB): x 4K | gate rows 0-31 | gate rows 32-63 | up rows 0-31 | up rows 32-63; mh = 1 takes chunks 0,1 in the other order")
    def chunk_ops(ch):
        base=(ch%4)*SLOT
        m0first=f"    s_mov_b32 m0, s{sW1K}" if base==0 else f"    s_add_u32 m0, m0, s{s4K}"
        nxt=f"    s_add_u32 m0, m0, s{s4K}"
        if ch<2:
            pre=[f"    s_xor_b32 s{sT1}, s{sSwap}, {ch}",
                 f"    s_lshl_b32 s{sT0}, s{sT1}, 7",
                 f"    s_add_u32 s{sT0}, s{sT0}, s{sXoff}",
                 f"    s_mul_i32 s{sT1}, s{sT1}, {64*7168}",
                 m0first,
                 f"    s_add_u32 s{sT1}, s{sT1}, s{sWoff}"]
            o1=f"    s_nop 0"
        else:
            pre=[m0first, f"    s_add_u32 s{sT0}, s{sXoff}, {ch*128}"]
            o1=f"    s_add_u32 s{sT1}, s{sWoff}, {ch*64*7168}"
        return [pre+[f"    buffer_load_dwordx4 v{vX}, s[{X}:{X+3}], s{sT0} offen lds"],
                [nxt,o1,f"    buffer_load_dwordx4 v{vWg}, s[{G}:{G+3}], s{sT1} offen lds"],
                [nxt,f"    s_add_u32 s{sT2}, s{sT1}, s{sR32}",f"    buffer_load_dwordx4 v{vWg}, s[{G}:{G+3}], s{sT2} offen lds"],
                [nxt,"    s_nop 0",f"    buffer_load_dwordx4 v{vWu}, s[{U}:{U+3}], s{sT1} offen lds"],
                [nxt,"    s_nop 0",f"    buffer_load_dwordx4 v{vWu}, s[{U}:{U+3}], s{sT2} offen lds"]]
    ops0=chunk_ops(0)
    for l in ops0[0][:-1]: a(l)
    a("    s_waitcnt lgkmcnt(0)")
    a(ops0[0][-1]); emit(ops0[1:])
    emit(chunk_ops(1))
    a("L_hot_end:")
    a(f"    buffer_load_dword v{vE}, off, s[{WS}:{WS+3}], s{sEp} sc1")
    late_kernargs()
    c("A operand (16 gate + 16 up columns): 4096 + mat*8192 + (8kg + (q>>2))*128 + ((wave ^ f)*32) + (q&3)*8")
    a(f"    v_bfe_u32 v{vT3}, v{vL}, 4, 1")
    a(f"    v_lshlrev_b32 v{vA}, 13, v{vT3}")
    a(f"    v_mul_u32_u24 v{vHsc}, {14*256}, v{vT3}")
    a(f"    v_lshrrev_b32 v{vT3}, 5, v{vL}")
    a(f"    v_lshl_add_u32 v{vA}, v{vT3}, 10, v{vA}")
    a(f"    v_lshl_add_u32 v{vHsc}, v{vT3}, 6, v{vHsc}")
    a(f"    v_bfe_u32 v{vA2}, v{vL}, 2, 2")
    a(f"    v_lshl_add_u32 v{vA}, v{vA2}, 7, v{vA}")
    a(f"    v_and_b32 v{vA2}, 3, v{vT1}")
    a(f"    v_xor_b32 v{vA2}, v{vA2}, v{vT0}")
    a(f"    v_lshl_add_u32 v{vA}, v{vA2}, 5, v{vA}")
    a(f"    v_and_b32 v{vA2}, 3, v{vL}")
    a(f"    v_lshl_add_u32 v{vA}, v{vA2}, 3, v{vA}")
    a(f"    v_add_u32 v{vA}, s{s4K}, v{vA}")
    a(f"    v_add_u32 v{vA2}, {2*SLOT}, v{vA}")
    c("B operand (32 tokens): token*128 + (((2*step + kg) ^ ((token>>1)&7))*16)")
    a(f"    v_bfe_u32 v{vB}, v{vL}, 1, 3")
    a(f"    v_xor_b32 v{vB}, v{vB}, v{vT3}")
    a(f"    v_lshlrev_b32 v{vB}, 4, v{vB}")
    a(f"    v_and_b32 v{vT3}, 31, v{vL}")
    a(f"    v_lshl_add_u32 v{vB}, v{vT3}, 7, v{vB}")
    for st in range(1,4):
        a(f"    v_xor_b32 v{vB+st}, {st*32}, v{vB}")
    a(f"    v_and_b32 v{vT3}, 15, v{vL}")
    a(f"    v_lshl_add_u32 v{vHsc}, v{vT3}, 2, v{vHsc}")
    a(f"    v_lshlrev_b32 v{vHs}, 2, v{vHsc}")
    common_setup()
    c("h store soffset: ((2j + mh)*56 + 4*(s>>1) + wave) * 512 B (checks: 128 B)")
    a(f"    s_lshl_b32 s{sT0}, s{sJ}, 1")
    a(f"    s_add_u32 s{sT0}, s{sT0}, s{sSwap}")
    a(f"    s_and_b32 s{sT1}, s{sS}, 14")
    a(f"    s_lshl_b32 s{sT1}, s{sT1}, 1")
    a(f"    s_add_u32 s{sT1}, s{sT1}, s{sW}")
    a(f"    s_mul_i32 s{sT2}, s{sT0}, 56")
    a(f"    s_add_u32 s{sT2}, s{sT2}, s{sT1}")
    a(f"    s_lshl_b32 s{sHs}, s{sT2}, 9")
    a(f"    s_add_u32 s{sHs}, s{sHs}, {HD}")
    a(f"    s_lshl_b32 s{sHsc}, s{sT2}, 7")
    a(f"    s_add_u32 s{sHsc}, s{sHsc}, {HC}")
    a(f"    s_mov_b32 s{sMask}, 0xffff0000")
    a(f"    s_mov_b32 s{sNl2e}, 0xbfb8aa3b              ; -log2(e)")
    warm()
    emit(chunk_ops(2))
    def wd_op(i):
        return [f"    s_mov_b32 m0, s{sW1K}" if i==0 else f"    s_add_u32 m0, m0, s{s4K}",
                f"    s_add_u32 s{sT0}, s{sWdA}, {i*32*2048}",
                f"    buffer_load_dwordx4 v{vWd}, s[{WD}:{WD+3}], s{sT0} offen lds"]
    def dsreads(ch, fr, lo=0, hi=4):
        base=(ch%4)*SLOT
        va,ab=(vA,base) if ch%4<2 else (vA2,base-2*SLOT)
        for st in range(lo,hi):
            fb=fr+8*st
            a(f"    ds_read_b64_tr_b16 v[{fb}:{fb+1}], v{va} offset:{ab+st*2048}")
            a(f"    ds_read_b64_tr_b16 v[{fb+2}:{fb+3}], v{va} offset:{ab+st*2048+512}")
            a(f"    ds_read_b128 v[{fb+4}:{fb+7}], v{vB+st} offset:{base}")
    def mfma(ch, fr, st):
        fb=fr+8*st
        src = "0" if (ch==0 and st==0) else f"v[{ACC}:{ACC+15}]"
        a(f"    v_mfma_f32_32x32x16_bf16 v[{ACC}:{ACC+15}], v[{fb}:{fb+3}], v[{fb+4}:{fb+7}], {src}")
    issued=[6,6,5]
    wdi=0
    c("iteration c: chunk c is multiplied, chunk c+1 is read from LDS, chunk c+4 is requested into the slot chunk c left")
    a(f"    s_waitcnt vmcnt({sum(issued[1:])})")
    a("    s_barrier")
    dsreads(0,FR)
    emit(chunk_ops(3)); issued.append(5)
    sched=(2,1,1,1); dsched=(2,2,0,0)
    for ch in range(15):
        cur,nxt=(FR,FR2) if ch%2==0 else (FR2,FR)
        c(f"--- c = {ch}")
        if ch==14:
            a("    s_waitcnt lgkmcnt(0)")
            for st in range(4): mfma(ch,cur,st)
            a(f"    s_waitcnt vmcnt({sum(issued[ch+2:])})")
            a("    s_barrier")
            dsreads(15,nxt)
            continue
        a(f"    s_waitcnt vmcnt({sum(issued[ch+2:])}) lgkmcnt(0)")
        a("    s_barrier")
        if ch+4<16: ops=chunk_ops(ch+4)
        else:
            n=WDN[ch-12]; ops=[wd_op(i) for i in range(wdi,wdi+n)]; wdi+=n
        if ch==0: ops.append([f"    buffer_load_dword v{vTag}, off, s[{DBG}:{DBG+3}], 0 sc1"])
        if ch==1: ops.append(mark_op())
        issued.append(len(ops))
        k=0; d=0
        sc=(0,0,0,0) if ch>=13 else sched
        for st in range(4):
            dsreads(ch+1,nxt,d,d+dsched[st]); d+=dsched[st]
            mfma(ch,cur,st)
            for _ in range(sc[st]):
                if k<len(ops): emit([ops[k]]); k+=1
        emit(ops[k:])
        if ch==4: tag_from('up')
    c("--- c = 15")
    for st in range(4):
        a(f"    s_waitcnt lgkmcnt({9-3*st})")
        mfma(15,FR2,st)
    a("    s_nop 11")
    c("h = bf16(bf16(silu(bf16(g))) * bf16(u)); g in v32..39, u in v40..47")
    T=FR
    for i in range(8): a(f"    v_cvt_pk_bf16_f32 v{ACC+i}, 0, v{ACC+i}")
    for i in range(4): a(f"    v_pk_mul_f32 v[{T+8+2*i}:{T+9+2*i}], v[{ACC+2*i}:{ACC+2*i+1}], s[{sMask}:{sNl2e}] op_sel:[0,1] op_sel_hi:[1,1]")
    for i in range(8):
        a(f"    v_exp_f32 v{T+8+i}, v{T+8+i}")
        if i>=4: a(f"    v_cvt_pk_bf16_f32 v{ACC+4+i}, 0, v{ACC+4+i}")
    for i in range(4): a(f"    v_pk_add_f32 v[{T+8+2*i}:{T+9+2*i}], v[{T+8+2*i}:{T+9+2*i}], 1.0 op_sel_hi:[1,0]")
    for i in range(8):
        a(f"    v_rcp_f32 v{T+8+i}, v{T+8+i}")
        if i>=4: a(f"    v_cvt_pk_bf16_f32 v{ACC+8+i}, 0, v{ACC+8+i}")
    for i in range(4): a(f"    v_pk_mul_f32 v[{ACC+2*i}:{ACC+2*i+1}], v[{ACC+2*i}:{ACC+2*i+1}], v[{T+8+2*i}:{T+9+2*i}]")
    for i in range(8): a(f"    v_cvt_pk_bf16_f32 v{ACC+i}, 0, v{ACC+i}")
    for i in range(4): a(f"    v_pk_mul_f32 v[{ACC+2*i}:{ACC+2*i+1}], v[{ACC+2*i}:{ACC+2*i+1}], v[{ACC+8+2*i}:{ACC+9+2*i}]")
    for i in range(4): a(f"    v_cvt_pk_bf16_f32 v{HV+i}, v{ACC+2*i}, v{ACC+2*i+1}")
    a(f"    buffer_store_dwordx4 v[{HV}:{HV+3}], v{vHs}, s[{WS}:{WS+3}], s{sHs} offen")
    a(f"    v_add3_u32 v{vHk}, v{HV}, v{HV+1}, v{HV+2}")
    a(f"    v_lshl_add_u32 v{vHk}, v{HV+3}, 1, v{vHk}")
    a(f"    v_xor_b32 v{vHk}, s{sTag}, v{vHk}")
    a(f"    buffer_store_dword v{vHk}, v{vHsc}, s[{WS}:{WS+3}], s{sHsc} offen")
    emit([wd_op(i) for i in range(wdi,14)])
    a("L_p2:")
    c("phase 2: the w_down slice is in LDS; h chunks and w_down fragments are fetched ahead of the MFMAs that use them")
    a("    s_waitcnt vmcnt(0)")
    a("L_p2_own:")
    a("    s_barrier")
    def wdread(cc,ct,jj):
        r=WF+(cc*4+ct)*4+2*jj
        a(f"    ds_read_b64_tr_b16 v[{r}:{r+1}], v{vD+ct} offset:{cc*4096+jj*1024}")
    def hash_step(cc,n):
        h=FR+4*cc
        if n==0: a(f"    v_add3_u32 v{vT0}, v{h}, v{h+1}, v{h+2}")
        if n==1: a(f"    v_lshl_add_u32 v{vT0}, v{h+3}, 1, v{vT0}")
        if n==2: a(f"    v_bitop3_b32 v{vAcc if cc==0 else (vT3 if cc%2 else vT0)}, v{vT0}, v{CK+cc}, v{vTag} bitop3:0x96")
        if n==3 and cc>0 and cc%2==0: a(f"    v_or3_b32 v{vAcc}, v{vAcc}, v{vT0}, v{vT3}")
    def hround(first):
        for cc in range(7):
            if first: a(f"    s_waitcnt vmcnt({2*(min(6,cc+FUSE-1)-cc)}) lgkmcnt({8 if cc<6 else 0})")
            else: a(f"    s_waitcnt vmcnt({12-2*cc})")
            h=FR+4*cc
            for n,ct in enumerate((2,3,0,1) if cc==6 else (0,1,2,3)):
                r=WF+(cc*4+ct)*4
                src="0" if cc==0 else f"v[{ACC+4*ct}:{ACC+4*ct+3}]"
                a(f"    v_mfma_f32_16x16x32_bf16 v[{ACC+4*ct}:{ACC+4*ct+3}], v[{h}:{h+3}], v[{r}:{r+3}], {src}")
                if first:
                    if cc+FUSE<7:
                        if n==0: hd(cc+FUSE)
                        if n==1: hc(cc+FUSE)
                    if cc+2<7:
                        wdread(cc+2,ct,0); wdread(cc+2,ct,1)
                hash_step(cc,n)
            if first and cc==5:
                c("a workgroup of this group is on another die (or not heard from): publish h at device scope as well")
                a(f"    v_cmp_ne_u32 vcc, v{vMk}, v{vMe}")
                a("    s_cbranch_vccnz L_pub")
                a("L_pub_done:")
        a("    s_nop 1")
        a(f"    v_cmp_ne_u32 vcc, 0, v{vAcc}")
        a("    s_cbranch_vccnz L_h_retry")
    for cc in range(FUSE):
        hd(cc); hc(cc)
        if cc==0: a(f"    buffer_load_dword v{vMk}, v{vMk}, s[{WS}:{WS+3}], 0 offen sc1")
        if cc<2:
            for ct in range(4):
                for jj in range(2): wdread(cc,ct,jj)
    hround(True)
    a("L_h_ok:")
    c("add the other K half (wave ^ 2), tag and send the partial sums")
    a(f"    ds_write_b128 v{vRw}, v[{ACC+8}:{ACC+11}]")
    a(f"    ds_write_b128 v{vRw}, v[{ACC+12}:{ACC+15}] offset:1024")
    a(f"    s_mov_b32 s{sSpin}, {SPIN}")
    a("    s_waitcnt lgkmcnt(0)")
    a("    s_barrier")
    a(f"    ds_read_b128 v[{FR}:{FR+3}], v{vRr}")
    a(f"    ds_read_b128 v[{FR+4}:{FR+7}], v{vRr} offset:1024")
    for q in range(2):
        a(f"    s_waitcnt lgkmcnt({1-q})")
        for i in range(2):
            r=4*q+2*i
            a(f"    v_pk_add_f32 v[{ACC+r}:{ACC+r+1}], v[{ACC+r}:{ACC+r+1}], v[{FR+r}:{FR+r+1}]")
        for r in range(4):
            a(f"    v_perm_b32 v{FR+8+4*q+r}, v{ACC+4*q+r}, v{vTag}, s{sSel+r}")
        a(f"    buffer_store_dwordx4 v[{FR+8+4*q}:{FR+11+4*q}], v{vPs}, s[{WS}:{WS+3}], s{sP} offen offset:{q*2048} sc1")
    R0=WF
    a("    s_waitcnt vmcnt(0)")
    a("L_r:")
    c("phase 3: 8 sources x 16 columns x 4 tokens per wave")
    for i in range(2):
        a(f"    buffer_load_dwordx4 v[{R0+4*i}:{R0+4*i+3}], v{vL16}, s[{WS}:{WS+3}], s{sRed} offen offset:{i*1024} sc1")
    for i in range(2):
        a(f"    s_waitcnt vmcnt({1-i})")
        for r in range(4):
            a(f"    v_xor_b32 v{R0+4*i+r}, s{sTB+r}, v{R0+4*i+r}")
        if i==0:
            a(f"    v_or3_b32 v{vAcc}, v{R0}, v{R0+1}, v{R0+2}")
        else:
            a(f"    v_or3_b32 v{vAcc}, v{vAcc}, v{R0+3}, v{R0+4}")
            a(f"    v_or3_b32 v{vT0}, v{R0+5}, v{R0+6}, v{R0+7}")
    a(f"    v_pk_add_f32 v[{ACC}:{ACC+1}], v[{R0}:{R0+1}], v[{R0+4}:{R0+5}]")
    a(f"    v_pk_add_f32 v[{ACC+2}:{ACC+3}], v[{R0+2}:{R0+3}], v[{R0+6}:{R0+7}]")
    a(f"    v_or_b32 v{vAcc}, v{vAcc}, v{vT0}")
    a(f"    v_and_b32 v{vAcc}, 0xff, v{vAcc}")
    a(f"    v_cmp_ne_u32 vcc, 0, v{vAcc}")
    a("    s_cbranch_vccnz L_r_retry")
    a(f"    v_permlane32_swap_b32 v{ACC}, v{ACC+2}")
    a(f"    v_permlane32_swap_b32 v{ACC+1}, v{ACC+3}")
    a("    s_nop 0")
    a(f"    v_pk_add_f32 v[{ACC}:{ACC+1}], v[{ACC}:{ACC+1}], v[{ACC+2}:{ACC+3}]")
    a("    s_nop 1")
    a(f"    v_permlane16_swap_b32 v{ACC}, v{ACC+1}")
    a("    s_nop 1")
    a(f"    v_add_f32 v{ACC}, v{ACC}, v{ACC+1}")
    a(f"    v_cvt_pk_bf16_f32 v{ACC}, v{ACC}, v{ACC}")
    a(f"    buffer_store_short v{ACC}, v{vOut}, s[{OUT}:{OUT+3}], s{sOut} offen")
    a("L_end:")
    a("    s_endpgm")
    a("L_stub:")
    a(f"    s_setpc_b64 s[{sPC}:{sPC+1}]")
    a("L_r_retry:")
    a(f"    s_sub_u32 s{sSpin}, s{sSpin}, 1")
    a("    s_cbranch_scc0 L_r")
    a("    s_endpgm")
    a("L_pub:")
    c("(prefetch-role waves have out-of-range offsets here: nothing is stored)")
    a(f"    s_add_u32 s{sHs}, s{sHs}, {HB}")
    a(f"    s_add_u32 s{sHsc}, s{sHsc}, {HB}")
    a(f"    buffer_store_dwordx4 v[{HV}:{HV+3}], v{vHs}, s[{WS}:{WS+3}], s{sHs} offen sc1")
    a(f"    buffer_store_dword v{vHk}, v{vHsc}, s[{WS}:{WS+3}], s{sHsc} offen sc1")
    a(f"    v_mov_b32 v{vMk}, v{vMe}")
    a("    s_waitcnt vmcnt(0)")
    a("    s_branch L_pub_done")
    a("L_h_retry:")
    a(f"    s_sub_u32 s{sSpin}, s{sSpin}, 1")
    a("    s_cbranch_scc1 L_end")
    a(f"    s_cmp_gt_u32 s{sSpin}, {SPIN-N0}")
    a("    s_cbranch_scc1 L_h")
    a(f"    v_xor_b32 v{vH16}, {HB}, v{vH16}")
    a(f"    v_xor_b32 v{vH4}, {HB}, v{vH4}")
    a("L_h:")
    for cc in range(7): hd(cc); hc(cc)
    hround(False)
    a("    s_branch L_h_ok")
    a("L_pf_other:")
    a("    s_waitcnt vmcnt(0)")
    a("L_pf_rest:")
    late_kernargs()
    common_setup()
    c("workgroups 14,15 share their w_down slice with 30,31: start at the other half")
    a(f"    s_add_u32 s{sWdB}, s{sWdA}, {7*32*2048}")
    a(f"    s_add_u32 s{sMB}, s{sW1K}, {7*4096}")
    a(f"    s_cmp_lt_u32 s{sS}, 16")
    a(f"    s_cselect_b32 s{sT0}, s{sWdB}, s{sWdA}")
    a(f"    s_cselect_b32 s{sWdB}, s{sWdA}, s{sWdB}")
    a(f"    s_mov_b32 s{sWdA}, s{sT0}")
    a(f"    s_cselect_b32 s{sMA}, s{sMB}, s{sW1K}")
    a(f"    s_cselect_b32 s{sMB}, s{sW1K}, s{sMB}")
    a(f"    v_mov_b32 v{vHs}, 0x7ffffff0")
    a(f"    v_mov_b32 v{vHsc}, v{vHs}")
    a(f"    s_mov_b32 s{sHs}, 0")
    a(f"    s_mov_b32 s{sHsc}, 0")
    for r in range(4): a(f"    v_mov_b32 v{HV+r}, 0")
    a(f"    v_mov_b32 v{vHk}, 0")
    c("the epoch word has arrived before d_debug[0] is read (waves 1-3 waited at L_pf_other)")
    a(f"    s_waitcnt vmcnt({npf}) lgkmcnt(0)")
    a(f"    buffer_load_dword v{vTag}, off, s[{DBG}:{DBG+3}], 0 sc1")
    c("wave 1 of p<9: bring the group's h lines (448 data + 112 check) into L2 so that the producers' stores hit")
    a(f"    s_cmp_lg_u32 s{sW}, 1")
    a("    s_cbranch_scc1 L_pf_notouch")
    a(f"    s_mul_i32 s{sT0}, s{sJ}, {14*4096}")
    a(f"    s_lshl_b32 s{sT1}, s{sSwap}, 13")
    a(f"    s_add_u32 s{sT0}, s{sT0}, s{sT1}")
    a(f"    s_add_u32 s{sT0}, s{sT0}, {HD}")
    a(f"    s_mul_i32 s{sT2}, s{sJ}, {14*1024}")
    a(f"    s_add_u32 s{sT2}, s{sT2}, s{sT1}")
    a(f"    s_add_u32 s{sT2}, s{sT2}, {HC-7*8192}")
    a(f"    s_cmp_ge_u32 s{sSwap}, 7")
    a(f"    s_cselect_b32 s{sT0}, s{sT2}, s{sT0}")
    a(f"    s_cmp_ge_u32 s{sSwap}, 9")
    a("    s_cbranch_scc1 L_pf_notouch")
    a(f"    v_lshlrev_b32 v{vT3}, 7, v{vL}")
    a(f"    buffer_load_dword v{vDum}, v{vT3}, s[{WS}:{WS+3}], s{sT0} offen")
    a("L_pf_notouch:")
    c("wave 0: lines with address bits [9:7] == 3 get half the L1 miss slots; spread those w_down columns (nb 3, 11) over all p")
    a(f"    s_cmp_lg_u32 s{sW}, 0")
    a("    s_cbranch_scc1 L_pf_noc3")
    a(f"    s_mul_i32 s{sT0}, s{sSwap}, 25")
    a(f"    s_mul_i32 s{sT1}, s{sJ}, 448")
    a(f"    s_add_u32 s{sT1}, s{sT1}, s{sT0}")
    a(f"    s_lshl_b32 s{sT1}, s{sT1}, 11")
    a(f"    v_min_u32 v{vT3}, 49, v{vL}")
    a(f"    v_lshlrev_b32 v{vT3}, 10, v{vT3}")
    a(f"    buffer_load_dword v{vDum}, v{vT3}, s[{WD}:{WD+3}], s{sT1} offen offset:384")
    a("L_pf_noc3:")
    a(f"    s_lshl_b32 s{sT2}, s2, 2")
    a(f"    s_add_u32 s{sT2}, s{sT2}, s{sW}")
    a(f"    buffer_load_dword v{vDum}, v{vMk}, s[{WS}:{WS+3}], 0 offen")
    emit([mark_op()])
    a("    s_barrier")
    for i in range(14):
        sm,sw=(sMA,sWdA) if i<7 else (sMB,sWdB)
        a(f"    s_mov_b32 m0, s{sm}" if i%7==0 else f"    s_add_u32 m0, m0, s{s4K}")
        a(f"    s_add_u32 s{sT0}, s{sw}, {(i%7)*32*2048}")
        a(f"    buffer_load_dwordx4 v{vWd}, s[{WD}:{WD+3}], s{sT0} offen lds")
    warm()
    a("    s_waitcnt vmcnt(14)")
    tag_from('pf')
    c("epoch owner (wave 1 of workgroup 157): publish the tag in d_debug[0], advance the epoch word once that store is done")
    a(f"    s_cmp_lg_u32 s{sT2}, {157*4+1}")
    a("    s_cbranch_scc1 L_p2")
    emit([one_lane(f"    buffer_store_dword v{vTag}, off, s[{DBG}:{DBG+3}], 0 sc1")])
    a("    s_waitcnt vmcnt(0)")
    emit([one_lane(f"    buffer_store_dword v{vTag}, off, s[{WS}:{WS+3}], s{sEp}")])
    a("L_last:")
    a("    s_branch L_p2_own")
    a('.section .rodata,"a"')
    a(".p2align 6")
    kernel_desc(a,NAME,NV,80,NV)
    open(path,"w").write(a.text())

if __name__=="__main__":
    gen(sys.argv[1] if len(sys.argv)>1 else "final.s")
```

```python
import sys
from asmlib import *
NAME="standalone__swiglu_ffn__sampling_kernel"
M,D,F=64,1024,3584
MK=0x1000; FLG=0x2000; AF=0x4000; HD=0x10000; HC=0x80000; PB=0x100000; HB=0x400000; WSN=0x500000
STAMP_OFF=128<<20
SPIN=1<<18
SLOT=20480
RS=57344

def gen(path, stamps=False, row0=0, wdflags="", outflags="", rsleep=0, N0=24, sched=(2,1,1,1), rwait=True, codepf=True,
        prost=False, c3help=True, dsched=(2,2,0,0), wdn=(5,2,0), setup_first=True, inter=True, pre=2, strm=False, perm=True, xstage=1, prew=None, wdepi=False, stfl='sc1', rdfl='sc1', warm=('retry',), split=7, xlead=3, c2late=False, earlyw=True, trim=True, dlead=1, fuse=4, dbg='', hfl='', rbar=False, rdelay=0, earlymark=True, gate=0, NG=48, xfirst=False, touch='read', prew2=None, otouch=False, dtouch=False, dbgc=0, hpre=None, af=None, NA=24, jitter=False, pfw=None, lastpre=True, hash2=True, fl=False, NP=40, pfsample=True, wfix=True, ownearly=False, owner=157, cpsel=None, rot=16, epi2=True, help0=0, help0d=0, light=False, epend=True, two=False, pfs=None, rw1=False, N0x=None):
    a=Asm()
    a(HEADER.rstrip())
    a("; @launch grid=(256,1,1) block=(256,1,1) lds=81920")
    a('.amdgcn_target "amdgcn-amd-amdhsa--gfx950"')
    a(".text")
    kernel_begin(a,NAME)
    X,G,U,WD,OUT,DBG,WS=4,8,12,16,20,24,28
    sJ,sS,sW,sW1K=32,33,34,35
    sT0,sT1,sT2=36,37,38
    sWoff,sXoff,sSwap=39,40,41
    sWdA,sWdB,sMA,sMB=42,43,44,45
    sTag=46
    sTB=48
    sSel=52
    sHd0,sHd1,sHc=56,57,58
    sP,sRed,sOut=59,60,61
    sMask,sNl2e=62,63
    sHs,sHsc,s4K,sR32=64,65,66,67
    sPC=68
    sMk,sFs,sFp,sSpin=70,71,72,73
    sE,sDv=74,75
    sEp=47
    sFm=98
    sST=76
    sFl=4
    NST=10
    vL=1; vT0,vT1,vT2,vT3=2,3,4,5
    vWg,vWu,vX,vA,vA2=6,7,8,9,10
    vB=11
    vWd=15; vD=16
    vTag=20; vL16=21; vDum=22; vRw=23
    vHs=24; vHsc=25; vPs=26; vOut=27; vAcc=28; vH16=29; vH4=30; vRr=31
    ACC=32
    FR=48
    CK=76
    WF=84
    FR2=84
    HV=196; vHk=200; vMk=201; vMe=202; vE=203; vGa=204; vG=205; PWV=208; vFa=206; vF=207
    NV=216
    def rawstamp(i):
        a(f"    s_memtime s[{sST+2*i}:{sST+2*i+1}]")
        a("    s_waitcnt lgkmcnt(0)")
    def pstamp(*ii):
        if stamps and prost:
            for i in ii: rawstamp(i)
    def stamp(*ii):
        for i in ii:
            if stamps and not (prost and i in (2,3,4,5,6,9)) and not ((strm or light) and i!=8): rawstamp(i)
    jn=[0]
    def jit(wgwide=True):
        if not jitter: return
        jn[0]+=1; n=jn[0]
        a("    s_memtime s[96:97]")
        a("    s_waitcnt lgkmcnt(0)")
        a("    s_mul_i32 s94, s2, 0x9e3779b1")
        a("    s_lshr_b32 s95, s96, 12" if wgwide else "    s_lshr_b32 s95, s96, 3")
        a("    s_xor_b32 s94, s94, s95")
        a("    s_mul_i32 s94, s94, 0x85ebca6b")
        a("    s_lshr_b32 s94, s94, 24")
        a("    s_and_b32 s95, s94, 3")
        a("    s_cmp_lg_u32 s95, 0")
        a(f"    s_cbranch_scc1 L_jx{n}")
        a("    s_lshr_b32 s94, s94, 2")
        a(f"L_jl{n}:")
        a("    s_sleep 8")
        a("    s_sub_u32 s94, s94, 1")
        a(f"    s_cbranch_scc0 L_jl{n}")
        a(f"L_jx{n}:")
    def emit(ops):
        for op in ops:
            for l in op: a(l)
    if stamps:
        a(f"    s_memrealtime s[{sST+2*NST}:{sST+2*NST+1}]")
        a(f"    s_memtime s[{sST}:{sST+1}]")
    a(f"    s_lshr_b32 s{sS}, s2, 3")
    a(f"    s_cmp_ge_u32 s{sS}, 32")
    a("    s_cbranch_scc1 L_end")
    jit(False)
    for i,b in ((0,X),(1,G),(2,U),(6,WS))+(((5,DBG),) if (dtouch or ownearly) else ()):
        a(f"    s_load_dwordx2 s[{b}:{b+1}], s[0:1], {8*i}")
    if codepf:
        if cpsel is not None:
            a(f"    s_cmp_lt_u32 s{sS}, {cpsel}")
            a("    s_cbranch_scc1 L_nocp")
        a(f"    s_getpc_b64 s[{sPC}:{sPC+1}]")
        a("L_pc:")
        a(f"    v_lshlrev_b32 v{vT3}, 7, v0")
        a(f"    v_min_u32 v{vT3}, L_last-L_pc, v{vT3}")
        a(f"    global_load_dword v{vDum}, v{vT3}, s[{sPC}:{sPC+1}]")
        a("L_nocp:")
    ncp=1 if (codepf and cpsel is None) else 0
    a(f"    v_lshrrev_b32 v{vT0}, 6, v0")
    a(f"    v_and_b32 v{vL}, 63, v0")
    a(f"    s_and_b32 s{sJ}, s2, 7")
    a(f"    v_readfirstlane_b32 s{sW}, v{vT0}")
    a(f"    s_mov_b32 s{X+3}, 0x20000")
    a(f"    s_mov_b32 s{X+2}, s{X+3}")
    a(f"    s_mov_b32 s{G+2}, {D*F*2}")
    a(f"    s_mov_b32 s{G+3}, s{X+3}")
    a(f"    s_mov_b32 s{U+2}, s{G+2}")
    a(f"    s_mov_b32 s{U+3}, s{X+3}")
    a(f"    s_mov_b32 s{WS+2}, {(256<<20) if stamps else WSN}")
    a(f"    s_mov_b32 s{WS+3}, s{X+3}")
    a(f"    s_mov_b32 s{sEp}, {0x4ff000 if epend else 0}")
    a(f"    v_lshrrev_b32 v{vT1}, 3, v{vL}")
    a(f"    v_and_b32 v{vT2}, 7, v{vL}")
    a(f"    s_lshl_b32 s{sW1K}, s{sW}, 10")
    a(f"    s_movk_i32 s{s4K}, 4096")
    a(f"    s_cmp_lt_u32 s{sS}, 14")
    a("    s_cbranch_scc1 L_up")
    if perm:
        a(f"    s_sub_u32 s{sSwap}, s{sS}, 12")
        a(f"    s_cmp_ge_u32 s{sSwap}, 18")
        a(f"    s_cselect_b32 s{sT0}, 18, 0")
        a(f"    s_sub_u32 s{sSwap}, s{sSwap}, s{sT0}")
        a(f"    s_movk_i32 s{sT1}, 0x90")
        a(f"    s_bitcmp1_b32 s{sT1}, s{sSwap}")
        a(f"    s_cselect_b32 s{sT0}, 3, 0")
        a(f"    s_mov_b32 s{sT1}, 0x8020")
        a(f"    s_bitcmp1_b32 s{sT1}, s{sSwap}")
        a(f"    s_cselect_b32 s{sT0}, 10, s{sT0}")
        a(f"    s_xor_b32 s{sSwap}, s{sSwap}, s{sT0}")
    else:
        a(f"    s_sub_u32 s{sSwap}, s{sS}, 14")
    a(f"    s_cmp_eq_u32 s{sW}, 0")
    a("    s_cbranch_scc1 L_pf_w0")
    if dtouch or ownearly:
        a(f"    s_movk_i32 s{DBG+2}, 256")
        a(f"    s_mov_b32 s{DBG+3}, s{X+3}")
    a("    s_waitcnt lgkmcnt(0)")
    a(f"    buffer_load_dword v{vE}, off, s[{WS}:{WS+3}], s{sEp} sc1")
    if ownearly: a(f"    buffer_load_dword v{vTag}, off, s[{DBG}:{DBG+3}], 0 sc1")
    elif dtouch: a(f"    buffer_load_dword v{vDum}, off, s[{DBG}:{DBG+3}], 0")
    a("    s_branch L_pf_other")
    a("L_pf_w0:")
    if split:
        rr=9*split
        R=-(-(1024-row0)//rr)
        a(f"    v_min_u32 v{vT3}, {7*split-1}, v{vL}")
        a(f"    v_mul_u32_u24 v{vWg}, 37, v{vT3}")
        a(f"    v_lshrrev_b32 v{vWg}, 8, v{vWg}")
        a(f"    v_mul_u32_u24 v{vWg}, {7168-7*128}, v{vWg}")
        a(f"    v_lshl_add_u32 v{vWg}, v{vT3}, 7, v{vWg}")
        a(f"    v_lshlrev_b32 v{vX}, 11, v{vL}")
        a(f"    s_mul_i32 s{sWoff}, s{sJ}, 896")
        a(f"    s_lshr_b32 s{sT0}, s{sSwap}, 1")
        a(f"    s_mul_i32 s{sT0}, s{sT0}, {split*7168}")
        a(f"    s_add_u32 s{sWoff}, s{sWoff}, s{sT0}")
        if row0: a(f"    s_add_u32 s{sWoff}, s{sWoff}, {row0*7168}")
        a(f"    s_lshl_b32 s{sXoff}, s{sSwap}, 7")
        a(f"    s_cmp_ge_u32 s{sSwap}, 16")
        a(f"    s_cselect_b32 s{sXoff}, s{X+2}, s{sXoff}")
        a(f"    s_mov_b32 s{sT1}, {R}")
        a(f"    s_mul_i32 s{sT2}, s{sSwap}, {int(64*64/rr)}")
        a(f"    s_lshr_b32 s{sT2}, s{sT2}, 6")
        a(f"    s_sub_i32 s{sT2}, s{sT2}, {xlead}")
        a(f"    s_max_i32 s{sT2}, s{sT2}, 0")
        a(f"    s_min_i32 s{sT2}, s{sT2}, {R-1}")
        a(f"    s_sub_u32 s{sT2}, {R}, s{sT2}")
        if help0:
            a(f"    s_lshr_b32 s{sMA}, s{sSwap}, 1")
            a(f"    s_mul_i32 s{sMA}, s{sMA}, 7")
            a(f"    s_add_u32 s{sMA}, s{sMA}, s{sJ}")
            a(f"    s_sub_u32 s{sMA}, s{sMA}, 1")
            a(f"    s_mul_i32 s{sMA}, s{sMA}, {split*7168}")
            a(f"    s_cmp_eq_u32 s{sJ}, 0")
            a(f"    s_cselect_b32 s{sMA}, s{G+2}, s{sMA}")
        a(f"    s_bitcmp1_b32 s{sSwap}, 0")
        a("    s_waitcnt lgkmcnt(0)")
        pstamp(2)
        a(f"    s_cselect_b64 s[{G}:{G+1}], s[{U}:{U+1}], s[{G}:{G+1}]")
        a(f"    buffer_load_dword v{vE}, off, s[{WS}:{WS+3}], s{sEp} sc1")
        for hh in range(help0):
            if hh: a(f"    s_add_u32 s{sMA}, s{sMA}, {63*split*7168}")
            a(f"    buffer_load_dword v{vDum}, v{vWg}, s[{G}:{G+3}], s{sMA} offen")
        a("L_pf_loop:")
        a(f"    s_cmp_lg_u32 s{sT1}, s{sT2}")
        a("    s_cbranch_scc1 L_pf_nox")
        a(f"    buffer_load_dword v{vDum}, v{vX}, s[{X}:{X+3}], s{sXoff} offen")
        a("L_pf_nox:")
        a(f"    buffer_load_dword v{vDum}, v{vWg}, s[{G}:{G+3}], s{sWoff} offen")
        a(f"    s_add_u32 s{sWoff}, s{sWoff}, {rr*7168}")
        if pfs:
            a(f"    s_cmp_lg_u32 s{sT1}, {R-pfs[0]+1}")
            a("    s_cbranch_scc1 L_pf_ns")
            a(f"    s_waitcnt vmcnt({pfs[1]})")
            a("L_pf_ns:")
        a(f"    s_sub_u32 s{sT1}, s{sT1}, 1")
        a(f"    s_cmp_lg_u32 s{sT1}, 0")
        a("    s_cbranch_scc1 L_pf_loop")
        npf=R+1+help0
    else:
        a(f"    v_min_u32 v{vT3}, 62, v{vL}")
        a(f"    v_mul_u32_u24 v{vWg}, 37, v{vT3}")
        a(f"    v_lshrrev_b32 v{vWg}, 8, v{vWg}")
        a(f"    v_mul_u32_u24 v{vWg}, {7168-7*128}, v{vWg}")
        a(f"    v_lshl_add_u32 v{vWg}, v{vT3}, 7, v{vWg}")
        a(f"    v_lshlrev_b32 v{vX}, 11, v{vL}")
        a(f"    s_mul_i32 s{sWoff}, s{sJ}, 896")
        a(f"    s_mul_i32 s{sT0}, s{sSwap}, {9*7168}")
        a(f"    s_add_u32 s{sWoff}, s{sWoff}, s{sT0}")
        if row0: a(f"    s_add_u32 s{sWoff}, s{sWoff}, {row0*7168}")
        a(f"    s_lshl_b32 s{sXoff}, s{sSwap}, 7")
        a(f"    s_cmp_ge_u32 s{sSwap}, 16")
        a(f"    s_cselect_b32 s{sXoff}, s{X+2}, s{sXoff}")
        R=-(-(1024-row0)//162)
        a(f"    s_mov_b32 s{sT1}, {R}")
        if xstage:
            a(f"    s_mul_i32 s{sT2}, s{sSwap}, 13")
            a(f"    s_lshr_b32 s{sT2}, s{sT2}, 5")
            a(f"    s_sub_i32 s{sT2}, s{sT2}, {xstage}")
            a(f"    s_max_i32 s{sT2}, s{sT2}, 0")
            a(f"    s_sub_u32 s{sT2}, {R}, s{sT2}")
        a("    s_waitcnt lgkmcnt(0)")
        pstamp(2)
        if not xstage: a(f"    buffer_load_dword v{vDum}, v{vX}, s[{X}:{X+3}], s{sXoff} offen")
        a(f"    buffer_load_dword v{vE}, off, s[{WS}:{WS+3}], s{sEp} sc1")
        a("L_pf_loop:")
        if xstage:
            a(f"    s_cmp_lg_u32 s{sT1}, s{sT2}")
            a("    s_cbranch_scc1 L_pf_nox")
            a(f"    buffer_load_dword v{vDum}, v{vX}, s[{X}:{X+3}], s{sXoff} offen")
            a("L_pf_nox:")
        a(f"    buffer_load_dword v{vDum}, v{vWg}, s[{G}:{G+3}], s{sWoff} offen")
        a(f"    buffer_load_dword v{vDum}, v{vWg}, s[{U}:{U+3}], s{sWoff} offen")
        a(f"    s_add_u32 s{sWoff}, s{sWoff}, {162*7168}")
        a(f"    s_sub_u32 s{sT1}, s{sT1}, 1")
        a(f"    s_cmp_lg_u32 s{sT1}, 0")
        a("    s_cbranch_scc1 L_pf_loop")
        npf=2*R+(1 if xstage else 0)
    pstamp(3)
    a("    s_branch L_pf_rest")

    def late_kernargs():
        for i,b in ((3,WD),(4,OUT))+(() if (dtouch or ownearly) else ((5,DBG),)):
            a(f"    s_load_dwordx2 s[{b}:{b+1}], s[0:1], {8*i}")
        a(f"    s_mov_b32 s{WD+2}, s{G+2}")
        a(f"    s_mov_b32 s{WD+3}, s{X+3}")
        a(f"    s_mov_b32 s{OUT+2}, s{X+3}")
        a(f"    s_mov_b32 s{OUT+3}, s{X+3}")
        a(f"    s_movk_i32 s{DBG+2}, 256")
        a(f"    s_mov_b32 s{DBG+3}, s{X+3}")
    def common_setup():
        a(f"    v_and_b32 v{vT3}, 6, v{vT1}")
        a(f"    v_xor_b32 v{vT3}, v{vT3}, v{vT2}")
        a(f"    v_lshlrev_b32 v{vT3}, 4, v{vT3}")
        a(f"    v_lshl_add_u32 v{vWd}, v{vT1}, 11, v{vT3}")
        a(f"    s_mul_i32 s{sWdA}, s{sJ}, {448*2048}")
        a(f"    s_and_b32 s{sT0}, s{sS}, 15")
        a(f"    s_lshl_b32 s{sT0}, s{sT0}, 7")
        a(f"    s_add_u32 s{sWdA}, s{sWdA}, s{sT0}")
        a(f"    s_lshl_b32 s{sT1}, s{sW}, 14")
        a(f"    s_add_u32 s{sWdA}, s{sWdA}, s{sT1}")
        a(f"    s_lshr_b32 s{sT2}, s{sS}, 4")
        a(f"    s_lshl_b32 s{sOut}, s{sT2}, 16")
        a(f"    s_add_u32 s{sOut}, s{sOut}, s{sT0}")
        a(f"    s_lshl_b32 s{sT0}, s{sJ}, 13")
        a(f"    s_add_u32 s{sOut}, s{sOut}, s{sT0}")
        a(f"    s_lshl_b32 s{sT0}, s{sW}, 5")
        a(f"    s_add_u32 s{sOut}, s{sOut}, s{sT0}")
        a(f"    s_lshr_b32 s{sT0}, s{sW}, 1")
        a(f"    s_lshl_b32 s{sT1}, s{sJ}, 1")
        a(f"    s_add_u32 s{sT1}, s{sT1}, s{sT2}")
        if fl:
            a(f"    s_lshl_b32 s{sFp}, s{sT1}, 7")
            a(f"    s_add_u32 s{sFp}, s{sFp}, {FLG}")
            a(f"    v_min_u32 v{vFa}, 27, v{vL}")
            a(f"    v_lshl_add_u32 v{vFa}, v{vFa}, 2, s{sFp}")
            a(f"    s_mul_i32 s{sFm+1}, s{sT0}, 14")
            a(f"    s_lshl_b32 s{sFm}, 0x3fff, s{sFm+1}")
            a(f"    s_mov_b32 s{sFm+1}, 0")
        a(f"    s_lshl_b32 s{sT1}, s{sT1}, 1")
        a(f"    s_and_b32 s{sT2}, s{sW}, 1")
        a(f"    s_add_u32 s{sT1}, s{sT1}, s{sT2}")
        a(f"    s_lshl_b32 s{sT1}, s{sT1}, 1")
        a(f"    s_add_u32 s{sT1}, s{sT1}, s{sT0}")
        a(f"    s_mul_i32 s{sT1}, s{sT1}, 7")
        a(f"    s_lshl_b32 s{sHc}, s{sT1}, 8")
        a(f"    s_add_u32 s{sHc}, s{sHc}, {HC}")
        a(f"    s_lshl_b32 s{sHd0}, s{sT1}, 10")
        a(f"    s_add_u32 s{sHd0}, s{sHd0}, {HD}")
        a(f"    s_add_u32 s{sHd1}, s{sHd0}, s{s4K}")
        a(f"    s_lshl_b32 s{sRed}, s{sS}, 16")
        a(f"    s_add_u32 s{sRed}, s{sRed}, {PB}")
        a(f"    s_lshl_b32 s{sT2}, s{sT2}, 15")
        a(f"    s_add_u32 s{sP}, s{sRed}, s{sT2}")
        a(f"    s_lshl_b32 s{sT2}, s{sT0}, 12")
        a(f"    s_add_u32 s{sP}, s{sP}, s{sT2}")
        a(f"    s_lshl_b32 s{sT2}, s{sJ}, 8")
        a(f"    s_add_u32 s{sP}, s{sP}, s{sT2}")
        a(f"    s_lshl_b32 s{sT2}, s{sJ}, 13")
        a(f"    s_add_u32 s{sRed}, s{sRed}, s{sT2}")
        a(f"    s_lshl_b32 s{sT2}, s{sW}, 11")
        a(f"    s_add_u32 s{sRed}, s{sRed}, s{sT2}")
        a(f"    s_mov_b32 s{sSel}, 0x07060500")
        for r in range(1,4):
            a(f"    s_add_u32 s{sSel+r}, s{sSel}, {r}")
        a(f"    v_lshlrev_b32 v{vL16}, 4, v{vL}")
        a(f"    v_lshlrev_b32 v{vH4}, 2, v{vL}")
        a(f"    v_mov_b32 v{vH16}, v{vL16}")
        a(f"    s_add_u32 s{sT2}, s{sT2}, {RS}")
        a(f"    v_add_u32 v{vRw}, s{sT2}, v{vL16}")
        a(f"    v_xor_b32 v{vRr}, s{s4K}, v{vRw}")
        a(f"    v_lshrrev_b32 v{vT0}, 5, v{vL}")
        a(f"    v_lshlrev_b32 v{vT0}, 11, v{vT0}")
        a(f"    v_bfe_u32 v{vT3}, v{vL}, 2, 3")
        a(f"    v_lshl_add_u32 v{vT0}, v{vT3}, 7, v{vT0}")
        a(f"    v_and_b32 v{vT3}, 3, v{vL}")
        a(f"    v_lshl_add_u32 v{vT0}, v{vT3}, 3, v{vT0}")
        a(f"    s_and_b32 s{sT1}, s{sW}, 2")
        a(f"    v_and_b32 v{vT3}, 3, v{vT1}")
        a(f"    v_xor_b32 v{vT3}, s{sT1}, v{vT3}")
        a(f"    v_lshl_add_u32 v{vT0}, v{vT3}, 5, v{vT0}")
        a(f"    s_mul_i32 s{sT0}, s{sT0}, 28672")
        a(f"    v_add_u32 v{vD}, s{sT0}, v{vT0}")
        for ct in range(1,4):
            a(f"    v_xor_b32 v{vD+ct}, {ct*32}, v{vD}")
        a(f"    v_lshrrev_b32 v{vT0}, 4, v{vL}")
        a(f"    v_and_b32 v{vT3}, 15, v{vL}")
        a(f"    v_lshlrev_b32 v{vPs}, 13, v{vT0}")
        a(f"    v_lshl_add_u32 v{vPs}, v{vT3}, 4, v{vPs}")
        a(f"    v_lshlrev_b32 v{vOut}, 11, v{vT0}")
        a(f"    v_lshl_add_u32 v{vOut}, v{vT3}, 1, v{vOut}")
        a(f"    s_mov_b32 s{sSpin}, {SPIN}")
        a(f"    s_lshl_b32 s{sMk}, s{sJ}, 7")
        a(f"    s_add_u32 s{sMk}, s{sMk}, {MK}")
        a(f"    v_and_b32 v{vMk}, 31, v{vL}")
        a(f"    v_lshl_add_u32 v{vMk}, v{vMk}, 2, s{sMk}")
        if af is None: a(f"    v_mov_b32 v{vGa}, v{vMk}")
        else:
            a(f"    s_lshl_b32 s{sFp}, s{sS}, 8")
            a(f"    s_add_u32 s{sFp}, s{sFp}, {AF}")
            a(f"    s_lshl_b32 s{sFs}, s{sJ}, 2")
            a(f"    s_add_u32 s{sFs}, s{sFs}, s{sFp}")
            a(f"    v_and_b32 v{vGa}, 28, v{vH4}")
            a(f"    s_mov_b32 s98, s{sW}")
            if isinstance(af,int):
                a(f"    s_cmp_eq_u32 s{sW}, 0")
                a(f"    s_cselect_b32 s{sFs}, s{sFs}, 0x7ffffff0")
        a(f"    s_lshl_b32 s{sT0}, s{sS}, 2")
        a(f"    s_add_u32 s{sMk}, s{sMk}, s{sT0}")
    def tag_from(lbl):
        a(f"    v_readfirstlane_b32 s{sE}, v{vE}")
        a(f"    v_readfirstlane_b32 s{sDv}, v{vTag}")
        a("    s_nop 0")
        a(f"    s_add_u32 s{sE}, s{sE}, 0x01010101")
        a(f"    s_cmp_eq_u32 s{sE}, 0")
        a(f"    s_cselect_b32 s{sE}, 0x02020202, s{sE}")
        a(f"    s_cmp_eq_u32 s{sDv}, 0")
        a(f"    s_cselect_b32 s{sTag}, s{sE}, s{sDv}")
        a(f"    v_mov_b32 v{vTag}, s{sTag}")
        if prew2 is not None:
            for r in range(4): a(f"    v_xor_b32 v{PWV+r}, 0x80, v{vTag}")
        for r in range(4):
            a(f"    s_bfe_u32 s{sTB+r}, s{sTag}, {0x80000+8*r}")
        if not earlymark:
            a(f"    s_getreg_b32 s{sPC}, hwreg(HW_REG_XCC_ID, 0, 4)")
            a(f"    s_lshl_b32 s{sPC}, s{sPC}, 24")
            a(f"    v_add_u32 v{vMe}, s{sPC}, v{vTag}")
        else:
            a(f"    s_cmp_eq_u32 s{sE}, s{sTag}" if wfix else f"    s_cmp_eq_u32 s{sDv}, 0")
            a(f"    s_cbranch_scc1 L_mk_{lbl}")
            emit([one_lane(f"    buffer_store_dword v{vTag}, off, s[{WS}:{WS+3}], s{sMk}")])
            a(f"L_mk_{lbl}:")
    def mark_value():
        return [f"    s_getreg_b32 s{sPC}, hwreg(HW_REG_XCC_ID, 0, 4)",
                f"    s_lshl_b32 s{sPC}, s{sPC}, 24",
                f"    s_add_u32 s{sPC}, s{sPC}, 0x5a",
                f"    v_add_u32 v{vMe}, s{sPC}, v{vE}"]
    def one_lane(instr):
        return ["    s_mov_b64 exec, 1", instr, "    s_mov_b64 exec, -1"]
    def mark_ops():
        return [one_lane(f"    buffer_store_dword v{vMe}, off, s[{WS}:{WS+3}], s{sMk}")]
    def warmup(which):
        for w in which:
            if w in warm: a(f"    s_call_b64 s[{sPC}:{sPC+1}], L_stub_{w}")
    def stub(w):
        if w in warm:
            a(f"L_stub_{w}:")
            a(f"    s_setpc_b64 s[{sPC}:{sPC+1}]")
    def hint(lbl, cond=False):
        a(f"    s_cmp_lg_u32 s98, 0")
        a(f"    s_cbranch_scc1 {lbl}")
        if cond:
            a(f"    v_cmp_ne_u32 vcc, 0, v{vAcc}")
            a(f"    s_cbranch_vccnz {lbl}")
        emit([one_lane(f"    buffer_store_dword v{vTag}, off, s[{WS}:{WS+3}], s{sFs} sc1")])
        a("    s_mov_b32 s98, 1")
        a(f"{lbl}:")
    def prew_ops():
        return [[f"    v_xor_b32 v{HV}, 0x80, v{vE}", f"    buffer_store_dwordx4 v[{HV}:{HV+3}], v{vPs}, s[{WS}:{WS+3}], s{sP} offen sc1"],
                [f"    buffer_store_dwordx4 v[{HV}:{HV+3}], v{vPs}, s[{WS}:{WS+3}], s{sP} offen offset:2048 sc1"]]
    def hloads():
        a(f"    buffer_load_dword v{vMk}, v{vMk}, s[{WS}:{WS+3}], 0 offen sc1")
        hloads2()
    def hload(cc):
        a(f"    buffer_load_dwordx4 v[{FR+4*cc}:{FR+4*cc+3}], v{vH16}, s[{WS}:{WS+3}], s{sHd0 if cc<4 else sHd1} offen offset:{(cc%4)*1024} sc1")
        a(f"    buffer_load_dword v{CK+cc}, v{vH4}, s[{WS}:{WS+3}], s{sHc} offen offset:{cc*256} sc1")
    def hloads2():
        for cc in range(7):
            a(f"    buffer_load_dwordx4 v[{FR+4*cc}:{FR+4*cc+3}], v{vH16}, s[{WS}:{WS+3}], s{sHd0 if cc<4 else sHd1} offen offset:{(cc%4)*1024} sc1")
            a(f"    buffer_load_dword v{CK+cc}, v{vH4}, s[{WS}:{WS+3}], s{sHc} offen offset:{cc*256} sc1")

    a("L_up:")
    a(f"    v_and_b32 v{vT3}, 2, v{vT1}")
    a(f"    v_xor_b32 v{vT3}, v{vT3}, v{vT2}")
    a(f"    v_mul_u32_u24 v{vWg}, 7168, v{vT1}")
    a(f"    v_lshl_add_u32 v{vWg}, v{vT3}, 4, v{vWg}")
    a(f"    v_xor_b32 v{vWu}, 64, v{vWg}")
    a(f"    v_bfe_u32 v{vT3}, v0, 4, 3")
    a(f"    v_xor_b32 v{vT3}, v{vT3}, v{vT2}")
    a(f"    v_lshlrev_b32 v{vT3}, 4, v{vT3}")
    a(f"    v_lshl_add_u32 v{vX}, v{vT1}, 11, v{vT3}")
    a(f"    s_mul_i32 s{sWoff}, s{sJ}, 7")
    a(f"    s_lshr_b32 s{sT0}, s{sS}, 1")
    a(f"    s_add_u32 s{sWoff}, s{sWoff}, s{sT0}")
    a(f"    s_lshl_b32 s{sWoff}, s{sWoff}, 7")
    a(f"    s_mul_i32 s{sT0}, s{sW}, {8*7168}")
    a(f"    s_add_u32 s{sWoff}, s{sWoff}, s{sT0}")
    a(f"    s_and_b32 s{sSwap}, s{sS}, 1")
    a(f"    s_lshl_b32 s{sXoff}, s{sSwap}, 16")
    a(f"    s_lshl_b32 s{sT0}, s{sW}, 14")
    a(f"    s_add_u32 s{sXoff}, s{sXoff}, s{sT0}")
    a(f"    s_mov_b32 s{sR32}, {32*7168}")
    def chunk_ops(c):
        base=(c%4)*SLOT
        m0first=f"    s_mov_b32 m0, s{sW1K}" if base==0 else f"    s_add_u32 m0, m0, s{s4K}"
        nxt=f"    s_add_u32 m0, m0, s{s4K}"
        if c<2:
            pre=[f"    s_xor_b32 s{sT1}, s{sSwap}, {c}",
                 f"    s_lshl_b32 s{sT0}, s{sT1}, 7",
                 f"    s_add_u32 s{sT0}, s{sT0}, s{sXoff}",
                 f"    s_mul_i32 s{sT1}, s{sT1}, {64*7168}",
                 m0first,
                 f"    s_add_u32 s{sT1}, s{sT1}, s{sWoff}"]
            o1=f"    s_nop 0"
        else:
            pre=[m0first, f"    s_add_u32 s{sT0}, s{sXoff}, {c*128}"]
            o1=f"    s_add_u32 s{sT1}, s{sWoff}, {c*64*7168}"
        return [pre+[f"    buffer_load_dwordx4 v{vX}, s[{X}:{X+3}], s{sT0} offen lds"],
                [nxt,o1,f"    buffer_load_dwordx4 v{vWg}, s[{G}:{G+3}], s{sT1} offen lds"],
                [nxt,f"    s_add_u32 s{sT2}, s{sT1}, s{sR32}",f"    buffer_load_dwordx4 v{vWg}, s[{G}:{G+3}], s{sT2} offen lds"],
                [nxt,"    s_nop 0",f"    buffer_load_dwordx4 v{vWu}, s[{U}:{U+3}], s{sT1} offen lds"],
                [nxt,"    s_nop 0",f"    buffer_load_dwordx4 v{vWu}, s[{U}:{U+3}], s{sT2} offen lds"]]
    if xfirst:
        def xop(c):
            if c<2:
                pre=[f"    s_xor_b32 s{sT1}, s{sSwap}, {c}", f"    s_lshl_b32 s{sT0}, s{sT1}, 7", f"    s_add_u32 m0, s{sW1K}, {c*SLOT}" if c else f"    s_mov_b32 m0, s{sW1K}", f"    s_add_u32 s{sT0}, s{sT0}, s{sXoff}"]
            else:
                pre=[f"    s_add_u32 m0, s{sW1K}, {c*SLOT}", f"    s_add_u32 s{sT0}, s{sXoff}, {c*128}"]
            return pre+[f"    buffer_load_dwordx4 v{vX}, s[{X}:{X+3}], s{sT0} offen lds"]
        def wops(c):
            o=chunk_ops(c)
            if c<2:
                pre=[f"    s_xor_b32 s{sT1}, s{sSwap}, {c}", f"    s_mul_i32 s{sT1}, s{sT1}, {64*7168}", f"    s_add_u32 s{sT1}, s{sT1}, s{sWoff}"]
            else: pre=[]
            first=[f"    s_add_u32 m0, s{sW1K}, {c*SLOT+4096}"]+o[1][1:]
            return [pre+first]+o[2:]
        x0=xop(0)
        for l in x0[:-1]: a(l)
        a("    s_waitcnt lgkmcnt(0)")
        pstamp(2)
        a(x0[-1])
        for c in range(1,4): emit([xop(c)])
        emit(wops(0))
        pstamp(3)
        emit(wops(1))
    else:
        ops0=chunk_ops(0)
        for l in ops0[0][:-1]: a(l)
        a("    s_waitcnt lgkmcnt(0)")
        pstamp(2)
        a(ops0[0][-1]); emit(ops0[1:])
        pstamp(3)
        emit(chunk_ops(1))
    a("L_hot_end:")
    a(f"    buffer_load_dword v{vE}, off, s[{WS}:{WS+3}], s{sEp} sc1")
    pstamp(4)
    late_kernargs()
    a(f"    v_bfe_u32 v{vT3}, v{vL}, 4, 1")
    a(f"    v_lshlrev_b32 v{vA}, 13, v{vT3}")
    a(f"    v_mul_u32_u24 v{vHsc}, {14*256}, v{vT3}")
    a(f"    v_lshrrev_b32 v{vT3}, 5, v{vL}")
    a(f"    v_lshl_add_u32 v{vA}, v{vT3}, 10, v{vA}")
    a(f"    v_lshl_add_u32 v{vHsc}, v{vT3}, 6, v{vHsc}")
    a(f"    v_bfe_u32 v{vA2}, v{vL}, 2, 2")
    a(f"    v_lshl_add_u32 v{vA}, v{vA2}, 7, v{vA}")
    a(f"    v_and_b32 v{vA2}, 3, v{vT1}")
    a(f"    v_xor_b32 v{vA2}, v{vA2}, v{vT0}")
    a(f"    v_lshl_add_u32 v{vA}, v{vA2}, 5, v{vA}")
    a(f"    v_and_b32 v{vA2}, 3, v{vL}")
    a(f"    v_lshl_add_u32 v{vA}, v{vA2}, 3, v{vA}")
    a(f"    v_add_u32 v{vA}, s{s4K}, v{vA}")
    a(f"    v_add_u32 v{vA2}, {2*SLOT}, v{vA}")
    a(f"    v_bfe_u32 v{vB}, v{vL}, 1, 3")
    a(f"    v_xor_b32 v{vB}, v{vB}, v{vT3}")
    a(f"    v_lshlrev_b32 v{vB}, 4, v{vB}")
    a(f"    v_and_b32 v{vT3}, 31, v{vL}")
    a(f"    v_lshl_add_u32 v{vB}, v{vT3}, 7, v{vB}")
    for st in range(1,4):
        a(f"    v_xor_b32 v{vB+st}, {st*32}, v{vB}")
    a(f"    v_and_b32 v{vT3}, 15, v{vL}")
    a(f"    v_lshl_add_u32 v{vHsc}, v{vT3}, 2, v{vHsc}")
    a(f"    v_lshlrev_b32 v{vHs}, 2, v{vHsc}")
    def up_setup():
        common_setup()
        a(f"    s_lshl_b32 s{sT0}, s{sJ}, 1")
        a(f"    s_add_u32 s{sT0}, s{sT0}, s{sSwap}")
        a(f"    s_and_b32 s{sT1}, s{sS}, 14")
        a(f"    s_lshl_b32 s{sT1}, s{sT1}, 1")
        a(f"    s_add_u32 s{sT1}, s{sT1}, s{sW}")
        a(f"    s_mul_i32 s{sT2}, s{sT0}, 56")
        a(f"    s_add_u32 s{sT2}, s{sT2}, s{sT1}")
        a(f"    s_lshl_b32 s{sHs}, s{sT2}, 9")
        a(f"    s_add_u32 s{sHs}, s{sHs}, {HD}")
        a(f"    s_lshl_b32 s{sHsc}, s{sT2}, 7")
        a(f"    s_add_u32 s{sHsc}, s{sHsc}, {HC}")
        if fl:
            a(f"    s_lshl_b32 s{sT0}, s{sT0}, 5")
            a(f"    s_add_u32 s{sT0}, s{sT0}, s{sT1}")
            a(f"    s_lshl_b32 s{sFs}, s{sT0}, 2")
            a(f"    s_add_u32 s{sFs}, s{sFs}, {FLG}")
            a(f"    s_and_b32 s{sT1}, s{sT1}, 28")
            a(f"    s_lshl_b32 s{sT1}, 15, s{sT1}")
            a(f"    s_cmp_eq_u32 s{sSwap}, 0")
            a(f"    s_cselect_b32 s{sT1}, s{sT1}, 0")
            a(f"    s_andn2_b32 s{sFm}, s{sFm}, s{sT1}")
        a(f"    s_mov_b32 s{sMask}, 0xffff0000")
        a(f"    s_mov_b32 s{sNl2e}, 0xbfb8aa3b")
    if setup_first: up_setup()
    warmup(("retry",))
    pstamp(5)
    if c2late and prost and stamps:
        a(f"    s_waitcnt vmcnt(6)")
        pstamp(6)
        emit(chunk_ops(2))
        pstamp(9)
    else:
        emit(wops(2) if xfirst else chunk_ops(2))
        if not setup_first: up_setup()
        pstamp(6,9)
    def wd_op(i):
        return [f"    s_mov_b32 m0, s{sW1K}" if i==0 else f"    s_add_u32 m0, m0, s{s4K}",
                f"    s_add_u32 s{sT0}, s{sWdA}, {i*32*2048}",
                f"    buffer_load_dwordx4 v{vWd}, s[{WD}:{WD+3}], s{sT0} offen lds"]
    def dsreads(c, fr, lo=0, hi=4):
        base=(c%4)*SLOT
        va,ab=(vA,base) if c%4<2 else (vA2,base-2*SLOT)
        for st in range(lo,hi):
            fb=fr+8*st
            a(f"    ds_read_b64_tr_b16 v[{fb}:{fb+1}], v{va} offset:{ab+st*2048}")
            a(f"    ds_read_b64_tr_b16 v[{fb+2}:{fb+3}], v{va} offset:{ab+st*2048+512}")
            a(f"    ds_read_b128 v[{fb+4}:{fb+7}], v{vB+st} offset:{base}")
    def mfma(c, fr, st):
        fb=fr+8*st
        src = "0" if (c==0 and st==0) else f"v[{ACC}:{ACC+15}]"
        a(f"    v_mfma_f32_32x32x16_bf16 v[{ACC}:{ACC+15}], v[{fb}:{fb+3}], v[{fb+4}:{fb+7}], {src}")
    issued=[8+ncp,5,4] if xfirst else [5+ncp,6,5]
    wdi=0
    a(f"    s_waitcnt vmcnt({sum(issued[1:])})")
    a("    s_barrier")
    stamp(1)
    dsreads(0,FR)
    emit(wops(3) if xfirst else chunk_ops(3)); issued.append(4 if xfirst else 5)
    for c in range(15):
        cur,nxt=(FR,FR2) if c%2==0 else (FR2,FR)
        if lastpre and c==14:
            assert wdn[2]==0
            a("    s_waitcnt lgkmcnt(0)")
            for st in range(4): mfma(c,cur,st)
            a(f"    s_waitcnt vmcnt({sum(issued[c+2:])})")
            a("    s_barrier")
            dsreads(15,nxt)
            continue
        a(f"    s_waitcnt vmcnt({sum(issued[c+2:])}) lgkmcnt(0)")
        a("    s_barrier")
        if strm and stamps and c in (0,2,4,6,8,10,12,14): rawstamp({0:1,2:2,4:3,6:4,8:5,10:6,12:7,14:9}[c])
        if c+4<16:
            ops=chunk_ops(c+4)
            if dbg=='nox': ops=[ops[0][:-1]+ops[1]]+ops[2:]
        else:
            n=wdn[c-12]; ops=[wd_op(i) for i in range(wdi,wdi+n)]; wdi+=n
        if c==dbgc: ops.append([f"    buffer_load_dword v{vTag}, off, s[{DBG}:{DBG+3}], 0 sc1"])
        if c==(1 if earlymark else 5): ops+=[(mark_value() if earlymark else [])+mark_ops()[0]]
        if prew is not None and c==prew: ops+=prew_ops()
        if otouch and c==7: ops+=[[f"    buffer_load_ushort v{vDum}, v{vOut}, s[{OUT}:{OUT+3}], s{sOut} offen"]]
        if touch=='write' and c==2:
            ops+=[[f"    v_mov_b32 v{HV+r}, 0" for r in range(4)]+[f"    v_xor_b32 v{vHk}, 0x80, v{vE}",
                   f"    buffer_store_dwordx4 v[{HV}:{HV+3}], v{vHs}, s[{WS}:{WS+3}], s{sHs} offen"],
                  [f"    buffer_store_dword v{vHk}, v{vHsc}, s[{WS}:{WS+3}], s{sHsc} offen"]]
        issued.append(len(ops))
        k=0; d=0
        sc=(0,0,0,0) if c>=13 else sched
        for st in range(4):
            dsreads(c+1,nxt,d,d+dsched[st]); d+=dsched[st]
            mfma(c,cur,st)
            for _ in range(sc[st]):
                if k<len(ops): emit([ops[k]]); k+=1
        emit(ops[k:])
        if c==4+dbgc: tag_from('up')
    for st in range(4):
        a(f"    s_waitcnt lgkmcnt({9-3*st})")
        mfma(15,FR2,st)
    stamp(2)
    if wdepi:
        emit([wd_op(i) for i in range(wdi,14)]); nw=14-wdi; wdi=14
        if 3*nw<12: a(f"    s_nop {11-3*nw}")
    else:
        a("    s_nop 11")
    T=FR
    if epi2:
        for i in range(8): a(f"    v_cvt_pk_bf16_f32 v{ACC+i}, 0, v{ACC+i}")
        for i in range(4): a(f"    v_pk_mul_f32 v[{T+8+2*i}:{T+9+2*i}], v[{ACC+2*i}:{ACC+2*i+1}], s[{sMask}:{sNl2e}] op_sel:[0,1] op_sel_hi:[1,1]")
        for i in range(8):
            a(f"    v_exp_f32 v{T+8+i}, v{T+8+i}")
            if i>=4: a(f"    v_cvt_pk_bf16_f32 v{ACC+4+i}, 0, v{ACC+4+i}")
        for i in range(4): a(f"    v_pk_add_f32 v[{T+8+2*i}:{T+9+2*i}], v[{T+8+2*i}:{T+9+2*i}], 1.0 op_sel_hi:[1,0]")
        for i in range(8):
            a(f"    v_rcp_f32 v{T+8+i}, v{T+8+i}")
            if i>=4: a(f"    v_cvt_pk_bf16_f32 v{ACC+8+i}, 0, v{ACC+8+i}")
        for i in range(4): a(f"    v_pk_mul_f32 v[{ACC+2*i}:{ACC+2*i+1}], v[{ACC+2*i}:{ACC+2*i+1}], v[{T+8+2*i}:{T+9+2*i}]")
        for i in range(8): a(f"    v_cvt_pk_bf16_f32 v{ACC+i}, 0, v{ACC+i}")
        for i in range(4): a(f"    v_pk_mul_f32 v[{ACC+2*i}:{ACC+2*i+1}], v[{ACC+2*i}:{ACC+2*i+1}], v[{ACC+8+2*i}:{ACC+9+2*i}]")
    else:
        for i in range(4): a(f"    v_cvt_pk_bf16_f32 v{T+i}, v{ACC+2*i}, v{ACC+2*i+1}")
        for i in range(4):
            a(f"    v_lshlrev_b32 v{ACC+2*i}, 16, v{T+i}")
            a(f"    v_and_b32 v{ACC+2*i+1}, s{sMask}, v{T+i}")
        if trim:
            for i in range(4): a(f"    v_pk_mul_f32 v[{T+8+2*i}:{T+9+2*i}], v[{ACC+2*i}:{ACC+2*i+1}], s[{sMask}:{sNl2e}] op_sel:[0,1] op_sel_hi:[1,1]")
        else:
            for i in range(8): a(f"    v_mul_f32 v{T+8+i}, s{sNl2e}, v{ACC+i}")
        for i in range(8):
            a(f"    v_exp_f32 v{T+8+i}, v{T+8+i}")
            if i<4: a(f"    v_cvt_pk_bf16_f32 v{T+4+i}, v{ACC+8+2*i}, v{ACC+8+2*i+1}")
        a("    s_nop 0")
        for i in range(4): a(f"    v_pk_add_f32 v[{T+8+2*i}:{T+9+2*i}], v[{T+8+2*i}:{T+9+2*i}], 1.0 op_sel_hi:[1,0]")
        for i in range(8):
            a(f"    v_rcp_f32 v{T+8+i}, v{T+8+i}")
            if i%2==0: a(f"    v_lshlrev_b32 v{ACC+8+i}, 16, v{T+4+i//2}")
            else: a(f"    v_and_b32 v{ACC+8+i}, s{sMask}, v{T+4+i//2}")
        for i in range(4): a(f"    v_pk_mul_f32 v[{ACC+2*i}:{ACC+2*i+1}], v[{ACC+2*i}:{ACC+2*i+1}], v[{T+8+2*i}:{T+9+2*i}]")
        for i in range(4): a(f"    v_cvt_pk_bf16_f32 v{T+i}, v{ACC+2*i}, v{ACC+2*i+1}")
        for i in range(4):
            a(f"    v_lshlrev_b32 v{ACC+2*i}, 16, v{T+i}")
            a(f"    v_and_b32 v{ACC+2*i+1}, s{sMask}, v{T+i}")
        for i in range(4): a(f"    v_pk_mul_f32 v[{ACC+2*i}:{ACC+2*i+1}], v[{ACC+2*i}:{ACC+2*i+1}], v[{ACC+8+2*i}:{ACC+9+2*i}]")
    for i in range(4): a(f"    v_cvt_pk_bf16_f32 v{HV+i}, v{ACC+2*i}, v{ACC+2*i+1}")
    jit(False)
    a(f"    buffer_store_dwordx4 v[{HV}:{HV+3}], v{vHs}, s[{WS}:{WS+3}], s{sHs} offen {hfl}")
    jit(False)
    if hash2:
        a(f"    v_add3_u32 v{vHk}, v{HV}, v{HV+1}, v{HV+2}")
        a(f"    v_lshl_add_u32 v{vHk}, v{HV+3}, 1, v{vHk}")
    else:
        a(f"    v_lshl_add_u32 v{vHk}, v{HV+3}, 1, v{HV+2}")
        a(f"    v_lshl_add_u32 v{vHk}, v{vHk}, 1, v{HV+1}")
        a(f"    v_lshl_add_u32 v{vHk}, v{vHk}, 1, v{HV}")
    a(f"    v_xor_b32 v{vHk}, s{sTag}, v{vHk}")
    a(f"    buffer_store_dword v{vHk}, v{vHsc}, s[{WS}:{WS+3}], s{sHsc} offen {hfl}")
    if fl: emit([one_lane(f"    buffer_store_dword v{vTag}, off, s[{WS}:{WS+3}], s{sFs}")])
    stamp(3)
    emit([wd_op(i) for i in range(wdi,14)])
    a("L_p2_fl:")
    if fl: a(f"    buffer_load_dword v{vF}, v{vFa}, s[{WS}:{WS+3}], 0 offen sc1")
    a("L_p2:")
    a(f"    s_waitcnt vmcnt({hpre or 0})")
    a("L_p2_own:")
    if hpre is not None:
        for cc in range(fuse):
            hload(cc)
            if cc==0: a(f"    buffer_load_dword v{vMk}, v{vMk}, s[{WS}:{WS+3}], 0 offen sc1")
        a(f"    s_waitcnt vmcnt({2*fuse+1})")
    if stamps:
        a(f"    s_cmp_lt_u32 s{sS}, 14")
        a("    s_cbranch_scc1 L_nost")
        stamp(2,3)
        a("L_nost:")
    if fl:
        a(f"    v_cmp_ne_u32 vcc, v{vF}, v{vTag}")
        a("    s_barrier")
        a(f"    s_and_b64 vcc, vcc, s[{sFm}:{sFm+1}]")
        a("    s_cbranch_scc1 L_slow")
    else:
        a("    s_barrier")
    stamp(4)
    def hash_step(cc,n):
        h=FR+4*cc
        if hash2:
            if n==0: a(f"    v_add3_u32 v{vT0}, v{h}, v{h+1}, v{h+2}")
            if n==1: a(f"    v_lshl_add_u32 v{vT0}, v{h+3}, 1, v{vT0}")
            if n==2: a(f"    v_bitop3_b32 v{vAcc if cc==0 else (vT3 if cc%2 else vT0)}, v{vT0}, v{CK+cc}, v{vTag} bitop3:0x96")
            if n==3 and cc>0 and cc%2==0: a(f"    v_or3_b32 v{vAcc}, v{vAcc}, v{vT0}, v{vT3}")
        else:
            if n==0: a(f"    v_lshl_add_u32 v{vT0}, v{h+3}, 1, v{h+2}")
            if n==1: a(f"    v_lshl_add_u32 v{vT0}, v{vT0}, 1, v{h+1}")
            if n==2: a(f"    v_lshl_add_u32 v{vT0}, v{vT0}, 1, v{h}")
    def hash_end(cc):
        if hash2:
            if cc==6: a("    s_nop 1")
        elif cc==0:
            a(f"    v_bitop3_b32 v{vAcc}, v{vT0}, v{CK+cc}, v{vTag} bitop3:0x96")
        else:
            a(f"    v_bitop3_b32 v{vT0}, v{vT0}, v{CK+cc}, v{vTag} bitop3:0x96")
            a(f"    v_or_b32 v{vAcc}, v{vAcc}, v{vT0}")
    def wdreads(cc):
        for ct in range(4):
            for jj in range(2):
                r=WF+(cc*4+ct)*4+2*jj
                a(f"    ds_read_b64_tr_b16 v[{r}:{r+1}], v{vD+ct} offset:{cc*4096+jj*1024}")
    def wdread(cc,ct,jj):
        r=WF+(cc*4+ct)*4+2*jj
        a(f"    ds_read_b64_tr_b16 v[{r}:{r+1}], v{vD+ct} offset:{cc*4096+jj*1024}")
    def hround(first):
        if first:
            for cc in range(pre if inter else 1): wdreads(cc)
        for cc in range(7):
            if first and not inter:
                if cc<6: wdreads(cc+1)
                a(f"    s_waitcnt vmcnt({12-2*cc}) lgkmcnt({8 if cc<6 else 0})")
            elif first:
                a(f"    s_waitcnt vmcnt({12-2*cc}) lgkmcnt({min(15,8*min(pre-1,6-cc))})")
            else:
                a(f"    s_waitcnt vmcnt({12-2*cc})")
            h=FR+4*cc
            for n,ct in enumerate((2,3,0,1) if (earlyw and cc==6) else (0,1,2,3)):
                r=WF+(cc*4+ct)*4
                src="0" if cc==0 else f"v[{ACC+4*ct}:{ACC+4*ct+3}]"
                a(f"    v_mfma_f32_16x16x32_bf16 v[{ACC+4*ct}:{ACC+4*ct+3}], v[{h}:{h+3}], v[{r}:{r+3}], {src}")
                if first and inter and cc+pre<7:
                    wdread(cc+pre,ct,0); wdread(cc+pre,ct,1)
                hash_step(cc,n)
            hash_end(cc)
            if cc==3 and not fuse:
                a(f"    v_cmp_ne_u32 vcc, v{vMk}, v{vMe}")
                a("    s_cbranch_vccnz L_pub")
                a("L_pub_done:")
        a(f"    v_cmp_ne_u32 vcc, 0, v{vAcc}")
    def hd(cc): a(f"    buffer_load_dwordx4 v[{FR+4*cc}:{FR+4*cc+3}], v{vH16}, s[{WS}:{WS+3}], s{sHd0 if cc<4 else sHd1} offen offset:{(cc%4)*1024} sc1")
    def hc(cc): a(f"    buffer_load_dword v{CK+cc}, v{vH4}, s[{WS}:{WS+3}], s{sHc} offen offset:{cc*256} sc1")
    if fuse:
        for cc in range(fuse):
            if hpre is None:
                hd(cc); hc(cc)
                if cc==0: a(f"    buffer_load_dword v{vMk}, v{vMk}, s[{WS}:{WS+3}], 0 offen sc1")
            if cc<2: wdreads(cc)
        for cc in range(7):
            ex=2 if (prew2 is not None and cc>prew2[0]) else 0
            if isinstance(af,int) and cc>af and cc<=af+fuse: ex+=1
            assert prew2 is None or prew2[0]+fuse>=6
            a(f"    s_waitcnt vmcnt({2*(min(6,cc+fuse-1)-cc)+ex}) lgkmcnt({8 if cc<6 else 0})")
            h=FR+4*cc
            for n,ct in enumerate((2,3,0,1) if (earlyw and cc==6) else (0,1,2,3)):
                r=WF+(cc*4+ct)*4
                src="0" if cc==0 else f"v[{ACC+4*ct}:{ACC+4*ct+3}]"
                a(f"    v_mfma_f32_16x16x32_bf16 v[{ACC+4*ct}:{ACC+4*ct+3}], v[{h}:{h+3}], v[{r}:{r+3}], {src}")
                if af=='early' and cc==6 and n==0: hint("L_hint1",True)
                if isinstance(af,int) and cc==af and n==2:
                    emit([one_lane(f"    buffer_store_dword v{vTag}, off, s[{WS}:{WS+3}], s{sFs} sc1")])
                if cc+fuse<7:
                    if n==0: hd(cc+fuse)
                    if n==1: hc(cc+fuse)
                if cc+2<7:
                    wdread(cc+2,ct,0); wdread(cc+2,ct,1)
                hash_step(cc,n)
            hash_end(cc)
            if prew2 is not None and cc==prew2[0]:
                if prew2[1]=='w':
                    a(f"    buffer_store_dwordx4 v[{PWV}:{PWV+3}], v{vPs}, s[{WS}:{WS+3}], s{sP} offen sc1")
                    a(f"    buffer_store_dwordx4 v[{PWV}:{PWV+3}], v{vPs}, s[{WS}:{WS+3}], s{sP} offen offset:2048 sc1")
                else:
                    a(f"    buffer_load_dword v{PWV}, v{vPs}, s[{WS}:{WS+3}], s{sP} offen")
                    a(f"    buffer_load_dword v{PWV}, v{vPs}, s[{WS}:{WS+3}], s{sP} offen offset:2048")
            if cc==5:
                a(f"    v_cmp_ne_u32 vcc, v{vMk}, v{vMe}")
                a("    s_cbranch_vccnz L_pub")
                a("L_pub_done:")
        a(f"    v_cmp_ne_u32 vcc, 0, v{vAcc}")
        a("    s_cbranch_vccnz L_h_retry")
    else:
        if dbg=='nochk':
            for cc in range(dlead): wdreads(cc)
            for cc in range(7):
                hd(cc); a(f"    buffer_load_dword v{CK+cc}, off, s[{WS}:{WS+3}], s{sHc} sc1")
                if cc==0: a(f"    buffer_load_dword v{vMk}, v{vMk}, s[{WS}:{WS+3}], 0 offen sc1")
                if cc+dlead<7: wdreads(cc+dlead)
        elif dbg=='noh':
            for cc in range(dlead): wdreads(cc)
            for cc in range(7):
                for _ in range(2): a(f"    buffer_load_dword v{CK+cc}, off, s[{WS}:{WS+3}], s{sHc} sc1")
                if cc==0: a(f"    buffer_load_dword v{vMk}, v{vMk}, s[{WS}:{WS+3}], 0 offen sc1")
                if cc+dlead<7: wdreads(cc+dlead)
        elif dbg=='nods':
            for cc in range(7):
                hload(cc)
                if cc==0: a(f"    buffer_load_dword v{vMk}, v{vMk}, s[{WS}:{WS+3}], 0 offen sc1")
        else:
          for cc in range(dlead): wdreads(cc)
          for cc in range(7):
            hload(cc)
            if cc==0: a(f"    buffer_load_dword v{vMk}, v{vMk}, s[{WS}:{WS+3}], 0 offen sc1")
            if cc+dlead<7: wdreads(cc+dlead)
        a("    s_waitcnt lgkmcnt(0)")
        a("L_h_go:")
        hround(False)
        if not dbg: a("    s_cbranch_vccnz L_h_retry")
    a("L_h_ok:")
    jit(False)
    stamp(5)
    if stamps: a(f"    s_sub_u32 s{sWoff}, {SPIN+1}, s{sSpin}")
    if af in ('early','late'): hint("L_hint2")
    if not earlyw: a("    s_nop 3")
    a(f"    ds_write_b128 v{vRw}, v[{ACC+8}:{ACC+11}]")
    a(f"    ds_write_b128 v{vRw}, v[{ACC+12}:{ACC+15}] offset:1024")
    a(f"    s_mov_b32 s{sSpin}, {SPIN}")
    a("    s_waitcnt lgkmcnt(0)")
    a("    s_barrier")
    a(f"    ds_read_b128 v[{FR}:{FR+3}], v{vRr}")
    a(f"    ds_read_b128 v[{FR+4}:{FR+7}], v{vRr} offset:1024")
    for q in range(2):
        a(f"    s_waitcnt lgkmcnt({1-q})")
        for i in range(2):
            r=4*q+2*i
            a(f"    v_pk_add_f32 v[{ACC+r}:{ACC+r+1}], v[{ACC+r}:{ACC+r+1}], v[{FR+r}:{FR+r+1}]")
        for r in range(4):
            a(f"    v_perm_b32 v{FR+8+4*q+r}, v{ACC+4*q+r}, v{vTag}, s{sSel+r}")
        jit(False)
        if not (dbg=='half' and q==1): a(f"    buffer_store_dwordx4 v[{FR+8+4*q}:{FR+11+4*q}], v{vPs}, s[{WS}:{WS+3}], s{sP} offen offset:{q*2048} {stfl}")
    stamp(6)
    R0=WF
    if af is not None:
        a(f"    s_cmp_lg_u32 s{sW}, 0")
        a("    s_cbranch_scc1 L_af_done")
        a(f"    s_movk_i32 s{sT0}, {NA}")
        a("    s_mov_b64 exec, 0xff")
        a("L_af:")
        a(f"    v_mov_b32 v{vG}, 0")
        a(f"    buffer_atomic_add v{vG}, v{vGa}, s[{WS}:{WS+3}], s{sFp} offen sc0 sc1")
        a(f"    s_sub_u32 s{sT0}, s{sT0}, 1")
        a("    s_waitcnt vmcnt(0)")
        a("    s_cbranch_scc1 L_af_x")
        a(f"    v_cmp_ne_u32 vcc, v{vG}, v{vTag}")
        a("    s_cbranch_vccnz L_af")
        a("L_af_x:")
        a("    s_mov_b64 exec, -1")
        a("L_af_done:")
        a("    s_waitcnt vmcnt(0)")
        a("    s_barrier")
    elif gate:
        if gate==2: a("    s_waitcnt vmcnt(0)")
        emit([one_lane(f"    buffer_store_dword v{vTag}, off, s[{WS}:{WS+3}], s{sMk} offset:1024")])
        a(f"    s_movk_i32 s{sT0}, {NG}")
        a("L_g:")
        a(f"    buffer_load_dword v{vG}, v{vGa}, s[{WS}:{WS+3}], 0 offen offset:1024 sc1")
        a(f"    s_sub_u32 s{sT0}, s{sT0}, 1")
        a("    s_waitcnt vmcnt(0)")
        a("    s_cbranch_scc1 L_g_done")
        a(f"    v_cmp_ne_u32 vcc, v{vG}, v{vTag}")
        a("    s_cbranch_vccnz L_g")
        a("L_g_done:")
    elif rwait: a("    s_waitcnt vmcnt(1)" if rw1 else "    s_waitcnt vmcnt(0)")
    if rbar: a("    s_barrier")
    if rdelay: a(f"    s_sleep {rdelay}")
    stamp(9)
    def rround():
        for i in range(2):
            a(f"    buffer_load_dwordx4 v[{R0+4*i}:{R0+4*i+3}], v{vL16}, s[{WS}:{WS+3}], s{sRed} offen offset:{i*1024} {rdfl}")
        a("L_r_proc:")
        for i in range(2):
            a(f"    s_waitcnt vmcnt({1-i})")
            for r in range(4):
                a(f"    v_xor_b32 v{R0+4*i+r}, s{sTB+r}, v{R0+4*i+r}")
            if i==0:
                a(f"    v_or3_b32 v{vAcc}, v{R0}, v{R0+1}, v{R0+2}")
            else:
                a(f"    v_or3_b32 v{vAcc}, v{vAcc}, v{R0+3}, v{R0+4}")
                a(f"    v_or3_b32 v{vT0}, v{R0+5}, v{R0+6}, v{R0+7}")
        a(f"    v_pk_add_f32 v[{ACC}:{ACC+1}], v[{R0}:{R0+1}], v[{R0+4}:{R0+5}]")
        a(f"    v_pk_add_f32 v[{ACC+2}:{ACC+3}], v[{R0+2}:{R0+3}], v[{R0+6}:{R0+7}]")
        a(f"    v_or_b32 v{vAcc}, v{vAcc}, v{vT0}")
        a(f"    v_and_b32 v{vAcc}, 0xff, v{vAcc}")
        a(f"    v_cmp_ne_u32 vcc, 0, v{vAcc}")
    if dbg=='half':
        a(f"    s_bitcmp1_b32 s{sW}, 0")
        a("    s_cbranch_scc1 L_end")
    if two:
        a(f"    s_cmp_eq_u32 s{sJ}, 0")
        a("    s_cbranch_scc1 L_r")
        a("    s_mov_b32 exec_lo, 0xffff0000")
        a(f"    buffer_load_dwordx4 v[{R0}:{R0+3}], v{vL16}, s[{WS}:{WS+3}], s{sRed} offen {rdfl}")
        a("    s_mov_b32 exec_lo, -1")
        a(f"    buffer_load_dwordx4 v[{R0+4}:{R0+7}], v{vL16}, s[{WS}:{WS+3}], s{sRed} offen offset:1024 {rdfl}")
        a(f"    s_waitcnt vmcnt({two-1})")
        a("    s_mov_b64 exec, 0xffff")
        a(f"    buffer_load_dwordx4 v[{R0}:{R0+3}], v{vL16}, s[{WS}:{WS+3}], s{sRed} offen {rdfl}")
        a("    s_mov_b64 exec, -1")
        a("    s_waitcnt vmcnt(0)")
        a("    s_branch L_r_proc")
    a("L_r:")
    rround()
    a("    s_cbranch_vccnz L_r_retry")
    stamp(7)
    a(f"    v_permlane32_swap_b32 v{ACC}, v{ACC+2}")
    a(f"    v_permlane32_swap_b32 v{ACC+1}, v{ACC+3}")
    a("    s_nop 0")
    a(f"    v_pk_add_f32 v[{ACC}:{ACC+1}], v[{ACC}:{ACC+1}], v[{ACC+2}:{ACC+3}]")
    a("    s_nop 1")
    a(f"    v_permlane16_swap_b32 v{ACC}, v{ACC+1}")
    a("    s_nop 1")
    a(f"    v_add_f32 v{ACC}, v{ACC}, v{ACC+1}")
    a(f"    v_cvt_pk_bf16_f32 v{ACC}, v{ACC}, v{ACC}")
    a(f"    buffer_store_short v{ACC}, v{vOut}, s[{OUT}:{OUT+3}], s{sOut} offen {outflags}")
    if stamps:
        a("    s_waitcnt vmcnt(0)")
        stamp(8)
        a(f"    s_memrealtime s[{sPC}:{sPC+1}]")
        a(f"    s_getreg_b32 s{sT1}, hwreg(HW_REG_XCC_ID)")
        a(f"    v_mov_b32 v{FR}, s{sST+2*NST}")
        for i in range(1,NST):
            a(f"    s_sub_u32 s{sT0}, s{sST+2*i}, s{sST}")
            a(f"    v_mov_b32 v{FR+i}, s{sT0}")
        a(f"    v_mov_b32 v{FR+NST}, s{sT1}")
        a("    s_waitcnt lgkmcnt(0)")
        a(f"    v_mov_b32 v{FR+NST+1}, s{sPC}")
        a(f"    s_sub_u32 s{sSpin}, {SPIN+1}, s{sSpin}")
        a(f"    s_lshl_b32 s{sSpin}, s{sSpin}, 16")
        a(f"    s_add_u32 s{sSpin}, s{sSpin}, s{sWoff}")
        a(f"    v_mov_b32 v{FR+NST+2}, s{sSpin}")
        a(f"    s_lshl_b32 s{sT0}, s2, 2")
        a(f"    s_add_u32 s{sT0}, s{sT0}, s{sW}")
        a(f"    s_lshl_b32 s{sT0}, s{sT0}, 6")
        a(f"    s_add_u32 s{sT0}, s{sT0}, {STAMP_OFF}")
        a("    s_mov_b64 exec, 1")
        for q in range(4):
            a(f"    buffer_store_dwordx4 v[{FR+4*q}:{FR+4*q+3}], off, s[{WS}:{WS+3}], s{sT0} offset:{16*q}")
    a("L_end:")
    a("    s_endpgm")
    stub("retry")
    a("L_r_retry:")
    if rsleep: a(f"    s_sleep {rsleep}")
    a(f"    s_sub_u32 s{sSpin}, s{sSpin}, 1")
    a("    s_cbranch_scc0 L_r")
    a("    s_endpgm")
    a("L_pub:")
    a(f"    s_add_u32 s{sHs}, s{sHs}, {HB}")
    a(f"    s_add_u32 s{sHsc}, s{sHsc}, {HB}")
    a(f"    buffer_store_dwordx4 v[{HV}:{HV+3}], v{vHs}, s[{WS}:{WS+3}], s{sHs} offen sc1")
    a(f"    buffer_store_dword v{vHk}, v{vHsc}, s[{WS}:{WS+3}], s{sHsc} offen sc1")
    a(f"    v_mov_b32 v{vMk}, v{vMe}")
    a("    s_waitcnt vmcnt(0)")
    a("    s_branch L_pub_done")
    if fl:
        a("L_slow:")
        stamp(4)
        a(f"    buffer_load_dword v{vF}, v{vFa}, s[{WS}:{WS+3}], 0 offen sc1")
        a(f"    buffer_load_dword v{vMk}, v{vMk}, s[{WS}:{WS+3}], 0 offen sc1")
        for cc in range(7): wdreads(cc)
        a(f"    s_movk_i32 s{sT0}, {NP}")
        a("    s_waitcnt vmcnt(0)")
        a(f"    v_cmp_ne_u32 vcc, v{vMk}, v{vMe}")
        a("    s_cbranch_vccz L_poll")
        a(f"    s_add_u32 s{sHs}, s{sHs}, {HB}")
        a(f"    s_add_u32 s{sHsc}, s{sHsc}, {HB}")
        a(f"    buffer_store_dwordx4 v[{HV}:{HV+3}], v{vHs}, s[{WS}:{WS+3}], s{sHs} offen sc1")
        a(f"    buffer_store_dword v{vHk}, v{vHsc}, s[{WS}:{WS+3}], s{sHsc} offen sc1")
        a("L_poll:")
        a(f"    v_cmp_ne_u32 vcc, v{vF}, v{vTag}")
        a("    s_waitcnt lgkmcnt(0)")
        a(f"    s_and_b64 vcc, vcc, s[{sFm}:{sFm+1}]")
        a("    s_cbranch_scc0 L_h")
        a(f"    buffer_load_dword v{vF}, v{vFa}, s[{WS}:{WS+3}], 0 offen sc1")
        a(f"    s_sub_u32 s{sT0}, s{sT0}, 1")
        a("    s_waitcnt vmcnt(0)")
        a("    s_cbranch_scc0 L_poll")
        a("    s_branch L_h")
    a("L_h_retry:")
    a(f"    s_sub_u32 s{sSpin}, s{sSpin}, 1")
    a("    s_cbranch_scc1 L_end")
    a(f"    s_cmp_gt_u32 s{sSpin}, {SPIN-N0}")
    a("    s_cbranch_scc1 L_h")
    a(f"    v_xor_b32 v{vH16}, {HB}, v{vH16}")
    a(f"    v_xor_b32 v{vH4}, {HB}, v{vH4}")
    a("L_h:")
    hloads2()
    if fuse:
        hround(False)
        a("    s_cbranch_vccnz L_h_retry")
        a("    s_branch L_h_ok")
    else:
        a("    s_branch L_h_go")
    a("L_pf_other:")
    a("    s_waitcnt vmcnt(0)")
    if ownearly:
        a(f"    s_lshl_b32 s{sT2}, s2, 2")
        a(f"    s_add_u32 s{sT2}, s{sT2}, s{sW}")
        a(f"    s_cmp_lg_u32 s{sT2}, {owner*4+1}")
        a("    s_cbranch_scc1 L_pf_rest")
        a(f"    v_readfirstlane_b32 s{sE}, v{vE}")
        a(f"    v_readfirstlane_b32 s{sDv}, v{vTag}")
        a("    s_nop 0")
        a(f"    s_add_u32 s{sE}, s{sE}, 0x01010101")
        a(f"    s_cmp_eq_u32 s{sE}, 0")
        a(f"    s_cselect_b32 s{sE}, 0x02020202, s{sE}")
        a(f"    s_cmp_eq_u32 s{sDv}, 0")
        a(f"    s_cselect_b32 s{sTag}, s{sE}, s{sDv}")
        a(f"    v_mov_b32 v{vT3}, s{sTag}")
        jit(False)
        emit([one_lane(f"    buffer_store_dword v{vT3}, off, s[{DBG}:{DBG+3}], 0 sc1")])
    a("L_pf_rest:")
    late_kernargs()
    common_setup()
    a(f"    s_add_u32 s{sWdB}, s{sWdA}, {7*32*2048}")
    a(f"    s_add_u32 s{sMB}, s{sW1K}, {7*4096}")
    a(f"    s_cmp_lt_u32 s{sS}, {rot}")
    a(f"    s_cselect_b32 s{sT0}, s{sWdB}, s{sWdA}")
    a(f"    s_cselect_b32 s{sWdB}, s{sWdA}, s{sWdB}")
    a(f"    s_mov_b32 s{sWdA}, s{sT0}")
    a(f"    s_cselect_b32 s{sMA}, s{sMB}, s{sW1K}")
    a(f"    s_cselect_b32 s{sMB}, s{sW1K}, s{sMB}")
    a(f"    v_mov_b32 v{vHs}, 0x7ffffff0")
    a(f"    v_mov_b32 v{vHsc}, v{vHs}")
    a(f"    s_mov_b32 s{sHs}, 0")
    a(f"    s_mov_b32 s{sHsc}, 0")
    for r in range(4): a(f"    v_mov_b32 v{HV+r}, 0")
    a(f"    v_mov_b32 v{vHk}, 0")
    a(f"    s_waitcnt vmcnt({npf}) lgkmcnt(0)")
    jit(False)
    a(f"    buffer_load_dword v{vTag}, off, s[{DBG}:{DBG+3}], 0 sc1")
    if prew is not None: emit(prew_ops())
    if otouch: a(f"    buffer_load_ushort v{vDum}, v{vOut}, s[{OUT}:{OUT+3}], s{sOut} offen")
    a(f"    s_cmp_lg_u32 s{sW}, {1 if touch=='read' else 9}")
    a("    s_cbranch_scc1 L_pf_notouch")
    a(f"    s_mul_i32 s{sT0}, s{sJ}, {14*4096}")
    a(f"    s_lshl_b32 s{sT1}, s{sSwap}, 13")
    a(f"    s_add_u32 s{sT0}, s{sT0}, s{sT1}")
    a(f"    s_add_u32 s{sT0}, s{sT0}, {HD}")
    a(f"    s_mul_i32 s{sT2}, s{sJ}, {14*1024}")
    a(f"    s_add_u32 s{sT2}, s{sT2}, s{sT1}")
    a(f"    s_add_u32 s{sT2}, s{sT2}, {HC-7*8192}")
    a(f"    s_cmp_ge_u32 s{sSwap}, 7")
    a(f"    s_cselect_b32 s{sT0}, s{sT2}, s{sT0}")
    a(f"    s_cmp_ge_u32 s{sSwap}, 9")
    a("    s_cbranch_scc1 L_pf_notouch")
    a(f"    v_lshlrev_b32 v{vT3}, 7, v{vL}")
    a(f"    buffer_load_dword v{vDum}, v{vT3}, s[{WS}:{WS+3}], s{sT0} offen")
    a("L_pf_notouch:")
    if help0d:
        a(f"    s_cmp_lg_u32 s{sW}, 3")
        a("    s_cbranch_scc1 L_pf_nohd")
        a(f"    s_cmp_eq_u32 s{sJ}, 0")
        a("    s_cbranch_scc1 L_pf_nohd")
        a(f"    s_mul_i32 s{sT0}, s{sSwap}, 7")
        a(f"    s_add_u32 s{sT0}, s{sT0}, s{sJ}")
        a(f"    s_sub_u32 s{sT0}, s{sT0}, 1")
        a(f"    s_mul_i32 s{sT0}, s{sT0}, {help0d*128}")
        a(f"    v_min_u32 v{vT3}, {help0d-1}, v{vL}")
        a(f"    v_lshlrev_b32 v{vT3}, 7, v{vT3}")
        a(f"    buffer_load_dword v{vDum}, v{vT3}, s[{WD}:{WD+3}], s{sT0} offen")
        a("L_pf_nohd:")
    if c3help:
        a(f"    s_cmp_lg_u32 s{sW}, 0")
        a("    s_cbranch_scc1 L_pf_noc3")
        a(f"    s_mul_i32 s{sT0}, s{sSwap}, 25")
        a(f"    s_mul_i32 s{sT1}, s{sJ}, 448")
        a(f"    s_add_u32 s{sT1}, s{sT1}, s{sT0}")
        a(f"    s_lshl_b32 s{sT1}, s{sT1}, 11")
        a(f"    v_min_u32 v{vT3}, 49, v{vL}")
        a(f"    v_lshlrev_b32 v{vT3}, 10, v{vT3}")
        a(f"    buffer_load_dword v{vDum}, v{vT3}, s[{WD}:{WD+3}], s{sT1} offen offset:384")
        a("L_pf_noc3:")
    pstamp(4,5,6,9)
    a(f"    s_lshl_b32 s{sT2}, s2, 2")
    a(f"    s_add_u32 s{sT2}, s{sT2}, s{sW}")
    a(f"    buffer_load_dword v{vDum}, v{vMk}, s[{WS}:{WS+3}], 0 offen")
    if fl: a(f"    buffer_load_dword v{vDum}, v{vFa}, s[{WS}:{WS+3}], 0 offen")
    if earlymark:
        emit([mark_value()+mark_ops()[0]])
    if pfw is not None:
        a(f"    s_cmp_lg_u32 s{sW}, 0")
        a("    s_cbranch_scc1 L_pf_nw")
        a(f"    s_waitcnt vmcnt({pfw+4})")
        a("L_pf_nw:")
    a("    s_barrier")
    stamp(1)
    for i in range(14):
        sm,sw=(sMA,sWdA) if i<7 else (sMB,sWdB)
        a(f"    s_mov_b32 m0, s{sm}" if i%7==0 else f"    s_add_u32 m0, m0, s{s4K}")
        a(f"    s_add_u32 s{sT0}, s{sw}, {(i%7)*32*2048}")
        a(f"    buffer_load_dwordx4 v{vWd}, s[{WD}:{WD+3}], s{sT0} offen {wdflags} lds")
    if strm and stamps:
        ex=14+3
        for r,slot in ((1,1),(2,2),(4,3),(6,4),(7,5)):
            a(f"    s_waitcnt vmcnt({min(63,ex+2*(R-r))})"); rawstamp(slot)
        for n,slot in ((9,6),(4,7),(0,9)):
            a(f"    s_waitcnt vmcnt({n})"); rawstamp(slot)
    warmup(("retry",))
    a("    s_waitcnt vmcnt(14)")
    tag_from('pf')
    if not earlymark: emit(mark_ops())
    a(f"    s_cmp_lg_u32 s{sT2}, {owner*4+1}")
    a("    s_cbranch_scc1 L_p2_fl")
    if not ownearly:
        emit([one_lane(f"    buffer_store_dword v{vTag}, off, s[{DBG}:{DBG+3}], 0 sc1")])
        a("    s_waitcnt vmcnt(0)")
    jit(False)
    emit([one_lane(f"    buffer_store_dword v{vTag}, off, s[{WS}:{WS+3}], s{sEp}")])
    a("L_last:")
    a("    s_branch L_p2_fl" if (fl or ownearly) else "    s_branch L_p2_own")
    a('.section .rodata,"a"')
    a(".p2align 6")
    kernel_desc(a,NAME,NV,102,NV)
    open(path,"w").write(a.text())

if __name__=="__main__":
    import json,os
    V=json.loads(os.environ["V"]) if "V" in os.environ else {"t1":{}}
    for o in V.values():
        for kk in ("wdn","sched","dsched","warm","prew2"):
            if kk in o: o[kk]=tuple(o[kk])
    names=[]
    for k,o in V.items():
        gen(k+".s",**o); gen(k+"_st.s",stamps=True,**o); names+= [k+("_st.s" if len(sys.argv)<2 else ".s")]
    print(" ".join(names))
```
